```python
import torch

def _softmax(x, axis=-1):
    return torch.softmax(x, dim=axis)
def _gelu(x):
    return torch.nn.functional.gelu(x, approximate="tanh")
def _silu(x):
    return torch.nn.functional.silu(x)
def _sigmoid(x):
    return torch.sigmoid(x)
def _layernorm(x, axis=-1, eps=1e-5):
    m = x.mean(dim=axis, keepdim=True)
    v = x.var(dim=axis, keepdim=True, unbiased=False)
    return (x - m) / torch.sqrt(v + eps)
def _scatter_add(tgt, idx, src, axis=0):
    return tgt.clone().index_add_(axis, idx, src)
def _segment_sum(src, seg, n):
    out = torch.zeros((n,) + src.shape[1:], dtype=src.dtype)
    return out.index_add_(0, seg, src)
def _pad(x, pw):
    flat = tuple(v for pair in reversed(pw) for v in pair)
    return torch.nn.functional.pad(x, flat)

kernel_name = 'standalone__depthwise_separable__vision'

def setup_inputs():

    _w = (lambda a: (lambda t: t.to(torch.bfloat16) if t.is_floating_point() else t)(torch.as_tensor(a)))
    H = W = 384
    C = 384
    k = 1
    return {
        "x": _w((lambda *s: torch.randn(*s, dtype=torch.bfloat16) * 0.05)(1, H, W, C)),
        "dw": _w((lambda *s: torch.randn(*s, dtype=torch.bfloat16) * 0.05)(k, k, C)),
        "pw": _w((lambda *s: torch.randn(*s, dtype=torch.bfloat16) * 0.05)(C, C)),
    }

def reference(x, dw, pw):
    B, H, W, C = x.shape
    k = dw.shape[0]
    pad = k // 2
    xp = _pad(x, ((0,0),(pad,pad),(pad,pad),(0,0)))
    out = torch.zeros_like(x)
    for i in range(k):
        for j in range(k):
            out = out + xp[:, i:i+H, j:j+W, :] * dw[i, j][None, None, None, :]
    return torch.einsum('bhwc,cd->bhwd', out, pw)
```

```python
import sys

HDR = open('standalone__depthwise_separable__vision.s.ref').read().split('; Override launch')[0]

class G:
    def __init__(self):
        self.sites = {}
        self.reset('collect')
    def reset(self, mode):
        self.mode = mode
        self.L = []
        self.vm = []
        self.lg = []
    def e(self, s):
        self.L.append(s)
    def vmop(self, s, tag=None):
        self.L.append(s); self.vm.append(tag)
    def lgop(self, s, tag=None):
        self.L.append(s); self.lg.append(tag)
    def _cnt(self, lst, tag):
        for i in range(len(lst)-1, -1, -1):
            if lst[i] == tag:
                return len(lst) - 1 - i
        raise KeyError(tag)
    def wait(self, key, vm=None, lg=None):
        if self.mode == 'collect':
            cur = self.sites.get(key, (63, 15))
            v = min(cur[0], self._cnt(self.vm, vm)) if vm is not None else cur[0]
            l = min(cur[1], self._cnt(self.lg, lg)) if lg is not None else cur[1]
            self.sites[key] = (v, l)
        v, l = self.sites[key]
        s = '  s_waitcnt'
        if vm is not None: s += f' vmcnt({v})'
        if lg is not None: s += f' lgkmcnt({l})'
        self.L.append(s)

def gen(opts):
    g = G()
    build(g, opts, unroll=True)
    g.reset('emit')
    build(g, opts, unroll=False)
    return '\n'.join(g.L) + '\n'

def build(g, opts, unroll):
    NT_LD = opts.get('nt_ld', '')
    NT_ST = opts.get('nt_st', '')
    DBG = int(opts.get('dbg', 0))
    PD = int(opts.get('pdbg', 0))
    R = int(opts.get('R', 4))
    P = R - 1
    e = g.e
    TM = 32
    TILE_B = TM * 768
    NTILE = 18
    STRIDE = 256 * TILE_B
    LDS_O = 0
    LDS_X = 2 * TILE_B
    LDS_TOTAL = LDS_X + R * TILE_B
    OOB = 113246208
    vLoad, vLdsW = 1, 2
    vLdsR = [3, 4, 5, 6]
    vOW4, vOW2, vOR = 7, 8, 9
    DW = 12
    S = [36, 48]
    XF = [60, 64, 68, 72]
    ACC = [76, 88]
    TMP = [100, 101, 102, 103]
    OB = [104, 108]
    vBW, vTr0, vTr2 = 76, 77, 78
    sX, sO, sP, sD = 4, 8, 12, 16
    sW, sLd, sStCur, sStIdx, sCnt, sMask, sT0 = 20, 21, 22, 23, 32, 33, 34
    sRdI, sWrI, sDelta, sOOB, sBase = 47, 48, 49, 50, 53

    stamp_n = [0]
    def stamp(force=False):
        if DBG and (force or not PD or stamp_n[0] == 0):
            e(f'  s_memrealtime s[{64+2*stamp_n[0]}:{65+2*stamp_n[0]}]')
            stamp_n[0] += 1
    def pstamp():
        if PD: stamp(True)

    e(HDR.rstrip('\n'))
    e(f'; @launch grid=(256,1,1) block=(512,1,1) lds={LDS_TOTAL}')
    e('.amdgcn_target "amdgcn-amd-amdhsa--gfx950"')
    e('.text')
    e('.globl standalone__depthwise_separable__vision_kernel')
    e('.p2align 8')
    e('.type standalone__depthwise_separable__vision_kernel,@function')
    e('standalone__depthwise_separable__vision_kernel:')
    e('  s_cmp_ge_u32 s2, 256')
    e('  s_cbranch_scc1 L_done')
    stamp()
    if DBG: e('  s_memtime s[96:97]')
    e('  s_load_dwordx4 s[24:27], s[0:1], 0')
    e('  s_load_dwordx4 s[28:31], s[0:1], 16')
    e('  v_lshrrev_b32 v11, 6, v0')
    e('  v_and_b32 v85, 63, v0')
    e(f'  v_readfirstlane_b32 s{sW}, v11')
    e('  v_and_b32 v104, 15, v85')
    e('  v_lshrrev_b32 v105, 4, v85')
    e(f'  s_mov_b32 s{sMask}, 0xffff0000')
    e(f'  s_lshl_b32 s{sT0}, s{sW}, 2')
    e(f'  v_add_u32 v106, s{sT0}, v105')
    e('  v_mul_u32_u24 v107, 0x300, v106')
    e(f'  v_lshl_add_u32 v{vLoad}, v104, 4, v107')
    ROT = int(opts.get('rot', 0))
    vLQ = [0, 10, 11]
    e('  s_lshr_b32 s36, s2, 3')
    e('  s_mul_i32 s37, s36, 0x5556')
    e('  s_lshr_b32 s37, s37, 16')
    e('  s_mul_i32 s38, s37, 3')
    e('  s_sub_u32 s38, s36, s38')
    e('  s_and_b32 s37, s37, 3')
    if not ROT:
        e('  s_mov_b32 s38, 0')
        e('  s_mov_b32 s37, 0')
    e('  s_lshl_b32 s39, s37, 2')
    e('  v_xor_b32 v84, s39, v104')
    e('  v_lshlrev_b32 v84, 4, v84')
    for q in range(3):
        e(f'  s_add_u32 s40, s38, {q}')
        e('  s_cmp_ge_u32 s40, 3')
        e('  s_cselect_b32 s41, 3, 0')
        e('  s_sub_u32 s40, s40, s41')
        e(f'  s_lshl_b32 s{60+q}, s40, 8')
        e(f'  v_add_u32 v{86+q}, s{60+q}, v84')
        e(f'  v_add_u32 v{vLQ[q]}, v{86+q}, v107')
    e('  s_mov_b32 s43, s37')
    e(f'  s_mul_i32 s{sLd}, s2, {TILE_B}')
    e(f'  s_mov_b32 s{sBase}, s{sLd}')
    e(f'  s_mov_b32 s{sOOB}, {OOB}')
    e(f'  s_lshr_b32 s{sStIdx}, s{sW}, 2')
    e(f'  s_sub_u32 s{sStIdx}, -1, s{sStIdx}')
    e('  s_waitcnt lgkmcnt(0)')
    for (sd, lo, nbytes) in ((sX, 24, 113246208), (sD, 26, 768), (sP, 28, 294912), (sO, 30, 113246208)):
        e(f'  s_mov_b32 s{sd}, s{lo}')
        e(f'  s_and_b32 s{sd+1}, s{lo+1}, 0xffff')
        e(f'  s_mov_b32 s{sd+2}, {nbytes}')
        e(f'  s_mov_b32 s{sd+3}, 0x00020000')

    def xload1(t, q):
        p = t & 1
        g.vmop(f'  buffer_load_dwordx4 v[{S[p]+4*q}:{S[p]+4*q+3}], v{vLQ[q]}, s[{sX}:{sX+3}], s{sOOB if opts.get("nold") else sLd} offen{NT_LD}', ('L', t, q))
        if q == 2:
            e(f'  s_add_u32 s{sLd}, s{sLd}, {STRIDE}')
    def xload(t):
        for q in range(3): xload1(t, q)
    def bload(ks):
        e(f'  s_xor_b32 s46, s43, {ks & 3}')
        e('  s_mul_i32 s46, s46, 24576')
        e(f'  s_mul_i32 s44, s{60 + ks // 4}, 384')
        e('  s_add_u32 s46, s46, s44')
        for i in range(3):
            g.vmop(f'  buffer_load_dwordx4 a[{12*ks+4*i}:{12*ks+4*i+3}], v{vLoad}, s[{sP}:{sP+3}], s46 offen offset:{i*256}', ('B', ks, i))

    xload(0)
    if opts.get('lat'):
        e('  s_waitcnt vmcnt(2)')
        pstamp()
        e('  s_waitcnt vmcnt(0)')
        pstamp()
    for q in range(3):
        g.vmop(f'  buffer_load_dwordx4 v[{88+4*q}:{88+4*q+3}], v84, s[{sD}:{sD+3}], s{60+q} offen', ('W', q))
    if opts.get('lat'):
        e('  s_waitcnt vmcnt(0)')
        pstamp()
    xload(1)
    if opts.get('lat'):
        e('  s_waitcnt vmcnt(0)')
        pstamp()
    for ks in range(4):
        bload(ks)
        if opts.get('lat') and ks < 2:
            e('  s_waitcnt vmcnt(0)')
            pstamp()
    e('  v_and_b32 v108, 15, v106')
    e('  v_xor_b32 v108, v108, v104')
    e(f'  v_lshl_add_u32 v{vLdsW}, v108, 4, v107')
    e(f'  v_add_u32 v{vLdsW}, {LDS_X}, v{vLdsW}')
    e('  v_and_b32 v108, 7, v106')
    e('  v_xor_b32 v108, v108, v104')
    e(f'  v_lshl_add_u32 v{vOR}, v108, 4, v107')
    e('  v_mul_u32_u24 v107, 0x300, v104')
    e('  v_xor_b32 v108, v105, v104')
    e(f'  v_lshl_add_u32 v{vLdsR[0]}, v108, 4, v107')
    e(f'  v_add_u32 v{vLdsR[0]}, {LDS_X}, v{vLdsR[0]}')
    for s in range(1, 4):
        e(f'  v_xor_b32 v{vLdsR[s]}, {s*64}, v{vLdsR[0]}')
    e(f'  s_and_b32 s37, s{sW}, 1')
    e('  s_lshl_b32 s39, s37, 1')
    e('  s_lshl_b32 s38, s37, 2')
    e('  s_sub_u32 s40, 4, s38')
    e(f'  s_mul_i32 s41, s{sW}, 6')
    e('  s_add_u32 s42, s41, s40')
    e('  s_add_u32 s41, s41, s39')
    e('  v_and_b32 v108, 7, v104')
    e('  v_add_u32 v109, s41, v105')
    e('  v_xor_b32 v109, v109, v108')
    e(f'  v_lshl_add_u32 v{vOW4}, v109, 4, v107')
    e('  v_lshrrev_b32 v109, 1, v105')
    e('  v_add_u32 v109, s42, v109')
    e('  v_xor_b32 v109, v109, v108')
    e(f'  v_lshl_add_u32 v{vOW2}, v109, 4, v107')
    e('  v_and_b32 v109, 1, v105')
    e(f'  v_lshl_add_u32 v{vOW2}, v109, 3, v{vOW2}')
    e(f'  s_mul_i32 s45, s{sW}, 3072')
    e('  v_lshlrev_b32 v108, 2, v105')
    e('  v_xor_b32 v108, v108, v104')
    e('  v_lshlrev_b32 v108, 4, v108')
    e('  v_lshl_add_u32 v108, v105, 8, v108')
    e(f'  v_add_u32 v{vBW}, s45, v108')
    e('  v_bfe_u32 v110, v85, 2, 2')
    e('  v_and_b32 v111, 3, v85')
    e('  v_mul_u32_u24 v79, 0x1800, v105')
    e('  v_lshl_add_u32 v79, v110, 8, v79')
    e('  v_lshlrev_b32 v80, 2, v110')
    e('  v_add_u32 v81, s41, v111')
    e('  v_lshrrev_b32 v82, 4, v81')
    e('  v_and_b32 v81, 15, v81')
    e('  v_xor_b32 v81, v81, v80')
    e(f'  v_lshl_add_u32 v{vTr0}, v82, 10, v79')
    e(f'  v_lshl_add_u32 v{vTr0}, v81, 4, v{vTr0}')
    e('  v_lshrrev_b32 v81, 1, v111')
    e('  v_add_u32 v81, s42, v81')
    e('  v_lshrrev_b32 v82, 4, v81')
    e('  v_and_b32 v81, 15, v81')
    e('  v_xor_b32 v81, v81, v80')
    e(f'  v_lshl_add_u32 v{vTr2}, v82, 10, v79')
    e(f'  v_lshl_add_u32 v{vTr2}, v81, 4, v{vTr2}')
    e('  v_and_b32 v81, 1, v111')
    e(f'  v_lshl_add_u32 v{vTr2}, v81, 3, v{vTr2}')
    e(f'  s_mov_b32 s{sRdI}, 0')
    e(f'  s_mov_b32 s{sWrI}, 0')
    e(f'  s_mov_b32 s51, {-(R-1)*TILE_B & 0xffffffff}')
    e(f'  s_mov_b32 s52, {TILE_B}')

    def ring_adv(sI, regs):
        out = [f'  s_add_u32 s{sI}, s{sI}, 1',
               f'  s_cmp_eq_u32 s{sI}, {R}',
               f'  s_cselect_b32 s{sDelta}, s51, s52',
               f'  s_cselect_b32 s{sI}, 0, s{sI}']
        for r in regs:
            out.append(f'  v_add_u32 v{r}, s{sDelta}, v{r}')
        for o in out: e(o)

    def scale_d(t, d):
        p = t & 1
        q, dd = d // 4, d % 4
        r = S[p] + d
        t0, t1 = (TMP[0], TMP[1]) if d % 2 == 0 else (TMP[2], TMP[3])
        return [f'  v_lshlrev_b32 v{t0}, 16, v{r}',
                f'  v_and_b32 v{t1}, s{sMask}, v{r}',
                f'  v_mul_f32 v{t0}, v{t0}, v{DW + 2*d}',
                f'  v_mul_f32 v{t1}, v{t1}, v{DW + 2*d + 1}',
                f'  v_cvt_pk_bf16_f32 v{r}, v{t0}, v{t1}']
    def ring_write(t, q):
        p = t & 1
        g.lgop(f'  ds_write_b128 v{vLdsW}, v[{S[p]+4*q}:{S[p]+4*q+3}] offset:{q*256}', ('RW', t, q))

    def scale_tile(t, key, nxt=True):
        for q in range(3):
            g.wait((key, q), vm=('L', t, q))
            for d in range(4*q, 4*q+4):
                for s in scale_d(t, d): e(s)
            ring_write(t, q)
            if nxt: xload1(t + 2, q)
        ring_adv(sWrI, [vLdsW])

    def dummy_st():
        for q in range(3):
            g.vmop(f'  buffer_store_dwordx4 v[{XF[0]}:{XF[0]+3}], v{vLoad}, s[{sO}:{sO+3}], s{sOOB} offen', None)

    g.wait('w', vm=('W', 2))
    pstamp()
    for i in range(12):
        e(f'  v_lshlrev_b32 v{DW+2*i}, 16, v{88+i}')
        e(f'  v_and_b32 v{DW+2*i+1}, s{sMask}, v{88+i}')
    scale_tile(0, 'p0')
    for ks in range(4, 8): bload(ks)
    scale_tile(1, 'p1')
    pstamp()
    if P == 2: dummy_st()
    for ks in range(8, 12): bload(ks)
    for ks in range(12):
        g.wait(('b', ks), vm=('B', ks, 2))
        if ks in (0, 3, 6, 9, 11): pstamp()
        so = LDS_O + (ks & 1) * 24576
        for i in range(3):
            g.lgop(f'  ds_write_b128 v{vBW}, a[{12*ks+4*i}:{12*ks+4*i+3}] offset:{so + i*1024}', ('BW', ks, i))
        e('  s_waitcnt lgkmcnt(0)')
        e('  s_barrier')
        for h in range(2):
            g.lgop(f'  ds_read_b64_tr_b16 a[{(ks*3+0)*4+2*h}:{(ks*3+0)*4+2*h+1}], v{vTr0} offset:{so + h*3072}')
            g.lgop(f'  ds_read_b64_tr_b16 a[{(ks*3+1)*4+2*h}:{(ks*3+1)*4+2*h+1}], v{vTr0} offset:{so + h*3072 + 8}')
            g.lgop(f'  ds_read_b64_tr_b16 a[{(ks*3+2)*4+2*h}:{(ks*3+2)*4+2*h+1}], v{vTr2} offset:{so + h*3072}')
        if ks == 5 and P >= 3:
            if P == 3: dummy_st()
            scale_tile(2, 'p2')
            if P == 3: dummy_st()
        if ks == 9 and P >= 4:
            dummy_st()
            scale_tile(3, 'p3')
    stamp()

    def rd(t, i):
        mt, ks = i // 12, i % 12
        x = XF[i % 4]
        g.lgop(f'  ds_read_b128 v[{x}:{x+3}], v{vLdsR[ks & 3]} offset:{mt*12288 + (ks >> 2)*256}', ('X', t, i))

    e('  s_waitcnt lgkmcnt(0)')
    e('  s_barrier')
    for i in range(3): rd(0, i)
    stamp()
    pstamp()

    def epi_cvt(mt):
        a = ACC[mt]
        return [f'  v_cvt_pk_bf16_f32 v{a + (i if i < 4 else i + 4)}, v{a+2*i}, v{a+2*i+1}' for i in range(6)]
    def epi_wr(mt, po):
        a = ACC[mt]
        g.lgop(f'  ds_write_b128 v{vOW4}, v[{a}:{a+3}] offset:{LDS_O + po*TILE_B + mt*12288}')
        g.lgop(f'  ds_write_b64 v{vOW2}, v[{a+8}:{a+9}] offset:{LDS_O + po*TILE_B + mt*12288}')
    def out_read(t, q):
        o = OB[q & 1]
        g.lgop(f'  ds_read_b128 v[{o}:{o+3}], v{vOR} offset:{LDS_O + ((t^1)&1)*TILE_B + q*256}', ('O', t, q))
    def st_off():
        e(f'  s_mul_i32 s{sStCur}, s{sStIdx}, {STRIDE}')
        e(f'  s_add_u32 s{sStCur}, s{sStCur}, s{sBase}')
        e(f'  s_cmp_lt_i32 s{sStIdx}, 0')
        e(f'  s_cselect_b32 s{sStCur}, s{sOOB}, s{sStCur}')
        e(f'  s_add_u32 s{sStIdx}, s{sStIdx}, 1')
    def out_store(t, q, key):
        o = OB[q & 1]
        g.wait((key, 'o', q), lg=('O', t, q))
        g.vmop(f'  buffer_store_dwordx4 v[{o}:{o+3}], v{vLoad}, s[{sO}:{sO+3}], s{sOOB if opts.get("nost") else sStCur} offen offset:{q*256}{NT_ST}', None)

    SCHED = opts.get('sched', 'A')
    def plan(hi):
        if SCHED == 'A':
            return dict(rd=[0, 0, 3], st=[2, 2, 4], sc=list(range(5, 13)) + list(range(15, 19)), e1=(1, 2), e0=(13, 14))
        if SCHED == 'B':
            return dict(rd=[0, 7, 15], st=[3, 10, 18], sc=[4, 5, 6, 8, 9, 11, 12, 16, 17, 19, 20, 21], e1=(1, 2), e0=(13, 14))
        if SCHED == 'C':
            if not hi:
                return dict(rd=[0, 3, 6], st=[3, 6, 9], sc=[10, 11, 12, 15, 16, 17, 18, 19, 20, 21, 22, 23], e1=(1, 2), e0=(13, 14))
            return dict(rd=[12, 15, 18], st=[15, 18, 21], sc=[0, 3, 4, 5, 6, 7, 8, 9, 10, 11, 12, 16], e1=(1, 2), e0=(13, 14))
        if SCHED == 'D':
            if not hi:
                return dict(rd=[0, 7, 15], st=[2, 10, 18], sc=[3, 4, 5, 6, 8, 9, 11, 12, 19, 20, 21, 22], e1=(1, 2), e0=(13, 14))
            return dict(rd=[3, 11, 19], st=[6, 14, 22], sc=[0, 4, 7, 8, 9, 10, 12, 15, 16, 17, 18, 20], e1=(1, 2), e0=(13, 14))

    def iteration(t, hi, st=False):
        p = t & 1
        kp = (p, hi)
        ts = t + P
        pl = plan(hi)
        F = {i: [] for i in range(24)}
        F[0] += [st_off]
        F[pl['e1'][0]] += epi_cvt(1)
        F[pl['e1'][1]] += [lambda: epi_wr(1, p)]
        for q in range(3):
            F[pl['st'][q]] += [lambda q=q: out_store(t, q, kp)]
        for q in range(3):
            F[pl['rd'][q]] += [lambda q=q: out_read(t, q)]
        steps = pl['sc']
        for d in range(12):
            s = steps[d]
            if d % 4 == 0:
                F[s].append(lambda d=d: g.wait((kp, 's', d), vm=('L', ts, d // 4)))
            F[s] += scale_d(ts, d)
            if d % 4 == 3:
                F[s].append(lambda d=d: ring_write(ts, d // 4))
                F[s].append(lambda d=d: xload1(ts + 2, d // 4))
        F[pl['e0'][0]] += epi_cvt(0)
        F[pl['e0'][1]] += [lambda: epi_wr(0, p)]
        F[steps[11]] += [lambda: ring_adv(sWrI, [vLdsW])]
        F[20] += [lambda: ring_adv(sRdI, vLdsR)]
        for i in range(24):
            mt, ks = i // 12, i % 12
            if i + 3 < 24: rd(t, i + 3)
            else: rd(t + 1, i + 3 - 24)
            g.wait((kp, 'x', i), lg=('X', t, i))
            x = XF[i % 4]
            a = ACC[mt]
            f = F[i]
            n = len(f)
            cuts = [0, (n + 2) // 3, (2 * n + 2) // 3, n]
            for tt in range(3):
                c = '0' if ks == 0 else f'v[{a+4*tt}:{a+4*tt+3}]'
                b = (ks*3 + tt)*4
                if not opts.get('nomfma'): e(f'  v_mfma_f32_16x16x32_bf16 v[{a+4*tt}:{a+4*tt+3}], a[{b}:{b+3}], v[{x}:{x+3}], {c}')
                for it in f[cuts[tt]:cuts[tt+1]]:
                    if callable(it): it()
                    else: e(it)
        g.wait((kp, 'end'), lg=('RW', ts, 2))
        if st and DBG:
            lab[0] += 1
            e(f'  s_cmp_lg_u32 s62, 1')
            e(f'  s_cbranch_scc1 L_nd{lab[0]}')
            e('  s_sub_u32 s26, s60, s64')
            e('  v_mov_b32 v101, s26')
            e('  v_mov_b32 v100, s63')
            e('  buffer_store_dword v101, v100, s[56:59], 0 offen')
            e('  s_add_u32 s63, s63, 4')
            e('  s_memrealtime s[60:61]')
            e(f'L_nd{lab[0]}:')
        e('  s_barrier')

    lab = [0]
    SPLIT = SCHED in ('C', 'D')
    if DBG:
        e('  s_load_dwordx2 s[24:25], s[0:1], 32')
        e('  s_memrealtime s[60:61]')
        e('  s_waitcnt lgkmcnt(0)')
        e('  s_mov_b32 s56, s24')
        e('  s_and_b32 s57, s25, 0xffff')
        e('  s_mov_b32 s58, 256')
        e('  s_mov_b32 s59, 0x00020000')
        e(f'  s_mov_b32 s63, {4*stamp_n[0]}')
        e(f'  s_cmp_eq_u32 s2, {DBG-1}')
        e('  s_cselect_b32 s62, 1, 0')
        e(f'  s_cmp_eq_u32 s{sW}, {int(opts.get("dbgw", 0))}')
        e('  s_cselect_b32 s62, s62, 0')
    if unroll:
        vm0, lg0 = list(g.vm), list(g.lg)
        for hi in ((0, 1) if SPLIT else (0,)):
            g.vm, g.lg = list(vm0), list(lg0)
            for t in range(NTILE):
                iteration(t, hi, st=(t & 1) == 1)
    else:
        e(f'  s_mov_b32 s{sCnt}, 9')
        if SPLIT:
            e(f'  s_cmp_ge_u32 s{sW}, 4')
            e('  s_cbranch_scc1 L_loop1')
        for hi in ((0, 1) if SPLIT else (0,)):
            e(f'L_loop{hi}:')
            iteration(0, hi)
            iteration(1, hi, True)
            e(f'  s_sub_u32 s{sCnt}, s{sCnt}, 1')
            e(f'  s_cmp_lg_u32 s{sCnt}, 0')
            e(f'  s_cbranch_scc1 L_loop{hi}')
            if SPLIT and hi == 0:
                e('  s_branch L_tail')
        e('L_tail:')
    t = NTILE
    out_read(t, 0); out_read(t, 1); st_off()
    e('  s_nop 1')
    for s in epi_cvt(1): e(s)
    epi_wr(1, 0)
    out_store(t, 0, 'T'); out_store(t, 1, 'T')
    out_read(t, 2)
    out_store(t, 2, 'T')
    e('  s_waitcnt lgkmcnt(0)')
    e('  s_barrier')
    t = NTILE + 1
    out_read(t, 0); out_read(t, 1); st_off()
    out_store(t, 0, 'U'); out_store(t, 1, 'U')
    out_read(t, 2)
    out_store(t, 2, 'U')
    if DBG:
        e('  s_waitcnt vmcnt(0)')
        e('  s_memrealtime s[54:55]')
        e('  s_memtime s[98:99]')
        e('  s_waitcnt lgkmcnt(0)')
        e('  s_cmp_lg_u32 s62, 1')
        e('  s_cbranch_scc1 L_done')
        e('  v_mov_b32 v100, 0')
        for i in range(stamp_n[0]):
            e(f'  s_sub_u32 s26, s{64+2*i}, s64')
            e('  v_mov_b32 v101, s26')
            e(f'  buffer_store_dword v101, v100, s[56:59], 0 offen offset:{4*i}')
        e('  s_sub_u32 s26, s60, s64')
        e('  v_mov_b32 v101, s26')
        e('  buffer_store_dword v101, v100, s[56:59], 0 offen offset:52')
        e('  s_sub_u32 s26, s54, s64')
        e('  v_mov_b32 v101, s26')
        e('  buffer_store_dword v101, v100, s[56:59], 0 offen offset:56')
        e('  s_sub_u32 s26, s98, s96')
        e('  v_mov_b32 v101, s26')
        e('  buffer_store_dword v101, v100, s[56:59], 0 offen offset:60')
    e('L_done:')
    e('  s_endpgm')
    e('.section .rodata,"a"')
    e('.p2align 6')
    e('.amdhsa_kernel standalone__depthwise_separable__vision_kernel')
    e('  .amdhsa_next_free_vgpr 256')
    e('  .amdhsa_next_free_sgpr 100')
    e('  .amdhsa_accum_offset 112')
    e('  .amdhsa_group_segment_fixed_size 0')
    e('  .amdhsa_kernarg_size 48')
    e('  .amdhsa_user_sgpr_count 2')
    e('  .amdhsa_user_sgpr_kernarg_segment_ptr 1')
    e('  .amdhsa_system_sgpr_workgroup_id_x 1')
    e('  .amdhsa_float_denorm_mode_32 3')
    e('.end_amdhsa_kernel')

if __name__ == '__main__':
    out = sys.argv[1]
    opts = dict(a.split('=', 1) for a in sys.argv[2:])
    for k in ('nt_ld', 'nt_st'):
        if k in opts:
            opts[k] = ' ' + opts[k].replace('+', ' ')
    open(out, 'w').write(gen(opts))
```

```python
import sys, re
from gen3 import G, HDR

def regs_of(tok):
    m = re.fullmatch(r'([va])\[(\d+):(\d+)\]', tok)
    if m: return {(m.group(1), i) for i in range(int(m.group(2)), int(m.group(3)) + 1)}
    m = re.fullmatch(r'([va])(\d+)', tok)
    if m: return {(m.group(1), int(m.group(2)))}
    return set()

def hazard_check(L):
    ins = [l.strip() for l in L if l.startswith('  ') and not l.strip().startswith(';')]
    hist = []
    st = 0
    last_valu = []
    for l in ins:
        op = l.split()[0]
        toks = [t.strip(',') for t in l.split()[1:]]
        allr = set()
        for t in toks: allr |= regs_of(t)
        if op.startswith('v_mfma'):
            d = regs_of(toks[0]); a = regs_of(toks[1]); b = regs_of(toks[2]); c = regs_of(toks[3])
            for (s0, r) in last_valu:
                if st - s0 - 1 < 2 and (r & (a | b | c)):
                    raise Exception(f'VALU->MFMA hazard: {l}')
            for (s0, dd, cc) in hist:
                if st - s0 - 1 < 12 and (dd & (a | b)):
                    raise Exception(f'MFMA D->A/B hazard: {l}')
                if st - s0 - 1 < 10 and (dd & c) and dd != c:
                    raise Exception(f'MFMA D->C overlap hazard: {l}')
            hist.append((st, d, c))
        elif op.startswith('v_') or op.startswith('ds_') or op.startswith('buffer_'):
            for (s0, dd, cc) in hist:
                if st - s0 - 1 < 12 and (dd & allr):
                    raise Exception(f'MFMA D->use hazard dist {st-s0-1}: {l}')
            if op.startswith('v_'):
                w = regs_of(toks[0])
                for (s0, dd, cc) in hist:
                    if st - s0 - 1 < 7 and (cc & w):
                        raise Exception(f'MFMA C WAR hazard: {l}')
                last_valu.append((st, w))
                last_valu = last_valu[-4:]
        hist = [h for h in hist if st - h[0] < 24]
        if op == 's_nop': st += int(toks[0]) + 1
        else: st += 1

def gen(opts):
    g = G()
    nv = 2 if int(opts.get('var', 1)) else 1
    for v in range(nv):
        g.reset('collect')
        build(g, opts, unroll=True, only=v)
        hazard_check(g.L)
    g.reset('emit')
    build(g, opts, unroll=False)
    L = g.L
    abl = opts.get('pabl', '')
    if abl:
        i0 = [i for i, l in enumerate(L) if 's_cbranch_scc1 L_ex1' in l][0]; i1 = L.index('L_exd:')
        def keep(l):
            s = l.strip()
            if 'M' in abl and s.startswith('v_mfma'): return False
            if 'T' in abl and s.startswith('ds_read_b64_tr'): return False
            if 'W' in abl and s.startswith('ds_write') and 'v12,' in s: return False
            if 'V' in abl and s.startswith('s_waitcnt vmcnt'): return False
            if 'L' in abl and s.startswith('buffer_load') and 's46' in s: return False
            if 'B' in abl and s.startswith('s_barrier'): return False
            return True
        L = L[:i0] + [l for l in L[i0:i1] if keep(l)] + L[i1:]
    return '\n'.join(L) + '\n'

def build(g, opts, unroll, only=None):
    NT_LD = opts.get('nt_ld', '')
    NT_ST = opts.get('nt_st', '')
    DBG = int(opts.get('dbg', 0))
    PD = int(opts.get('pdbg', 0))
    R = int(opts.get('R', 4))
    P = int(opts.get('P', 3))
    VAR = int(opts.get('var', 1))
    e = g.e
    TILE_B = 32 * 768
    NTILE = 18
    STRIDE = 256 * TILE_B
    LDS_O = 0
    LDS_X = 2 * TILE_B
    LDS_TOTAL = LDS_X + R * TILE_B
    OOB = 113246208
    vLoad = 1
    vLdsW = [2, 3]
    vLdsR = list(range(4, 12))
    vOW = [12, 13, 14, 15]
    vOR = [16, 17]
    TMP = [18, 19, 20, 21]
    DW = 24
    S = [48, 72]
    XF = [96, 100, 104, 108]
    ACC = [112, 160]
    OB = [208, 212]
    vBW = 12; vTr = 13
    XF2 = [208, 212, 216, 220]
    BV = 224
    T = list(range(176, 200))
    sX, sO, sP, sD = 4, 8, 12, 16
    sW, sLd, sSt, sCnt, sMask, sT0 = 20, 21, 22, 32, 33, 34
    sRdI, sWrI, sDR, sDWr, sOOB = 47, 48, 49, 55, 50

    def breg(i, n=4):
        if i < 256: return f'a[{i}:{i+n-1}]'
        return f'v[{BV+i-256}:{BV+i-256+n-1}]'

    stamp_n = [0]
    def stamp(force=False):
        if DBG and (force or not PD or stamp_n[0] == 0):
            e(f'  s_memrealtime s[{64+2*stamp_n[0]}:{65+2*stamp_n[0]}]')
            stamp_n[0] += 1
    def pstamp():
        if PD: stamp(True)

    e(HDR.rstrip('\n'))
    e(f'; @launch grid=(256,1,1) block=(256,1,1) lds={LDS_TOTAL}')
    e('.amdgcn_target "amdgcn-amd-amdhsa--gfx950"')
    e('.text')
    e('.globl standalone__depthwise_separable__vision_kernel')
    e('.p2align 8')
    e('.type standalone__depthwise_separable__vision_kernel,@function')
    e('standalone__depthwise_separable__vision_kernel:')
    e('  s_cmp_ge_u32 s2, 256')
    e('  s_cbranch_scc1 L_done')
    stamp()
    if DBG: e('  s_memtime s[96:97]')
    e('  s_load_dwordx4 s[24:27], s[0:1], 0')
    e('  s_load_dwordx4 s[28:31], s[0:1], 16')
    lane, lo4, hi2, row, rowb = T[0], T[1], T[2], T[3], T[4]
    e(f'  v_lshrrev_b32 v{T[5]}, 6, v0')
    e(f'  v_and_b32 v{lane}, 63, v0')
    e(f'  v_readfirstlane_b32 s{sW}, v{T[5]}')
    e(f'  v_and_b32 v{lo4}, 15, v{lane}')
    e(f'  v_lshrrev_b32 v{hi2}, 4, v{lane}')
    e(f'  s_mov_b32 s{sMask}, 0xffff0000')
    e(f'  s_lshl_b32 s{sT0}, s{sW}, 3')
    e(f'  v_add_u32 v{row}, s{sT0}, v{hi2}')
    e(f'  v_mul_u32_u24 v{rowb}, 0x300, v{row}')
    e(f'  v_lshl_add_u32 v{vLoad}, v{lo4}, 4, v{rowb}')
    e(f'  v_lshlrev_b32 v{T[6]}, 4, v{lo4}')
    e(f'  s_mul_i32 s{sLd}, s2, {TILE_B}')
    e(f'  s_mov_b32 s{sSt}, s{sLd}')
    e(f'  s_mov_b32 s{sOOB}, {OOB}')
    e('  s_lshr_b32 s36, s2, 3')
    e('  s_mul_i32 s36, s36, 9216')
    e(f'  s_mul_i32 s37, s{sW}, 2304')
    e('  s_add_u32 s36, s36, s37')
    e(f'  v_lshlrev_b32 v{T[7]}, 4, v{lane}')
    e('  s_waitcnt lgkmcnt(0)')
    for (sd, lo, nbytes) in ((sX, 24, 113246208), (sD, 26, 768), (sP, 28, 294912), (sO, 30, 113246208)):
        e(f'  s_mov_b32 s{sd}, s{lo}')
        e(f'  s_and_b32 s{sd+1}, s{lo+1}, 0xffff')
        e(f'  s_mov_b32 s{sd+2}, {nbytes}')
        e(f'  s_mov_b32 s{sd+3}, 0x00020000')

    def xload1(t, u):
        p = t & 1
        rg, q = u // 3, u % 3
        g.vmop(f'  buffer_load_dwordx4 v[{S[p]+4*u}:{S[p]+4*u+3}], v{vLoad}, s[{sX}:{sX+3}], s{sOOB if opts.get("nold") else sLd} offen offset:{rg*3072+q*256}{NT_LD}', ('L', t, u))
        if u == 5:
            e(f'  s_add_u32 s{sLd}, s{sLd}, {STRIDE}')
    def xload(t):
        for u in range(6): xload1(t, u)
    def bload(c, u0=0, u1=6):
        e(f'  s_mov_b32 s46, {c*24576}')
        for u in range(u0, u1):
            rg, q = u // 3, u % 3
            g.vmop(f'  buffer_load_dwordx4 {breg(24*c+4*u)}, v{vLoad}, s[{sP}:{sP+3}], s46 offen offset:{rg*3072+q*256}', ('B', c, u))

    g.vmop(f'  buffer_load_dwordx4 v[{XF[0]}:{XF[0]+3}], v{T[7]}, s[{sP}:{sP+3}], s36 offen')
    g.vmop(f'  buffer_load_dwordx4 v[{XF[1]}:{XF[1]+3}], v{T[7]}, s[{sP}:{sP+3}], s36 offen offset:1024')
    g.vmop(f'  buffer_load_dwordx4 v[{XF[2]}:{XF[2]+3}], v{T[6]}, s[{sP}:{sP+3}], s36 offen offset:2048')
    for q in range(3):
        g.vmop(f'  buffer_load_dwordx4 v[{160+4*q}:{160+4*q+3}], v{T[6]}, s[{sD}:{sD+3}], 0 offen offset:{q*256}', ('W', q))
    xload(0); xload(1)
    NB0 = int(opts.get('nb0', 1))
    NB1 = int(opts.get('nb1', 2))
    NB2 = int(opts.get('nb2', 3))
    for c in range(NB0): bload(c)

    for rg in range(2):
        e(f'  v_add_u32 v{T[8]}, {4*rg}, v{row}')
        e(f'  v_and_b32 v{T[9]}, 15, v{T[8]}')
        e(f'  v_xor_b32 v{T[9]}, v{T[9]}, v{lo4}')
        e(f'  v_mul_u32_u24 v{T[10]}, 0x300, v{T[8]}')
        e(f'  v_lshl_add_u32 v{vLdsW[rg]}, v{T[9]}, 4, v{T[10]}')
        e(f'  v_add_u32 v{vLdsW[rg]}, {LDS_X}, v{vLdsW[rg]}')
        e(f'  v_and_b32 v{T[9]}, 7, v{T[8]}')
        e(f'  v_xor_b32 v{T[9]}, v{T[9]}, v{lo4}')
        e(f'  v_lshl_add_u32 v{vOR[rg]}, v{T[9]}, 4, v{T[10]}')
    j, h = T[8], T[9]
    e(f'  v_and_b32 v{j}, 31, v{lane}')
    e(f'  v_lshrrev_b32 v{h}, 5, v{lane}')
    e(f'  v_mul_u32_u24 v{T[10]}, 0x300, v{j}')
    e(f'  v_xor_b32 v{T[11]}, v{h}, v{lo4}')
    e(f'  v_lshl_add_u32 v{vLdsR[0]}, v{T[11]}, 4, v{T[10]}')
    e(f'  v_add_u32 v{vLdsR[0]}, {LDS_X}, v{vLdsR[0]}')
    for s in range(1, 8):
        e(f'  v_xor_b32 v{vLdsR[s]}, {s*32}, v{vLdsR[0]}')
    e(f'  s_mul_i32 s41, s{sW}, 12')
    e(f'  s_mul_i32 s45, s{sW}, 6144')
    e(f'  v_lshlrev_b32 v{T[12]}, 2, v{hi2}')
    e(f'  v_xor_b32 v{T[12]}, v{T[12]}, v{lo4}')
    e(f'  v_lshlrev_b32 v{T[12]}, 4, v{T[12]}')
    e(f'  v_lshl_add_u32 v{T[12]}, v{hi2}, 8, v{T[12]}')
    e(f'  v_add_u32 v{vBW}, s45, v{T[12]}')
    r_, c_ = T[12], T[13]
    e(f'  v_bfe_u32 v{r_}, v{lane}, 2, 2')
    e(f'  v_and_b32 v{c_}, 3, v{lane}')
    e(f'  v_lshrrev_b32 v{T[14]}, 1, v{hi2}')
    e(f'  v_mul_u32_u24 v{T[14]}, 0x1800, v{T[14]}')
    e(f'  v_lshl_add_u32 v{T[14]}, v{r_}, 8, v{T[14]}')
    e(f'  v_lshrrev_b32 v{T[15]}, 1, v{c_}')
    e(f'  v_lshl_add_u32 v{T[14]}, v{T[15]}, 3, v{T[14]}')
    e(f'  v_and_b32 v{T[15]}, 1, v{hi2}')
    e(f'  v_lshlrev_b32 v{T[15]}, 1, v{T[15]}')
    e(f'  v_and_b32 v{T[16]}, 1, v{c_}')
    e(f'  v_add_u32 v{T[15]}, v{T[15]}, v{T[16]}')
    e(f'  v_add_u32 v{T[15]}, s41, v{T[15]}')
    e(f'  v_lshlrev_b32 v{T[16]}, 2, v{r_}')
    for t in range(3):
        e(f'  v_add_u32 v{T[17]}, {4*t}, v{T[15]}')
        e(f'  v_lshrrev_b32 v{T[18]}, 4, v{T[17]}')
        e(f'  v_and_b32 v{T[17]}, 15, v{T[17]}')
        e(f'  v_xor_b32 v{T[17]}, v{T[17]}, v{T[16]}')
        e(f'  v_lshl_add_u32 v{vTr+t}, v{T[18]}, 10, v{T[14]}')
        e(f'  v_lshl_add_u32 v{vTr+t}, v{T[17]}, 4, v{vTr+t}')
    e(f'  s_mov_b32 s{sRdI}, 2')
    e(f'  s_mov_b32 s{sWrI}, 0')
    e(f'  s_mov_b32 s51, {-(R-1)*TILE_B & 0xffffffff}')
    e(f'  s_mov_b32 s52, {TILE_B}')
    for c in range(NB0, NB1): bload(c)

    def ring_adv_s(sI, sDl):
        return [f'  s_add_u32 s{sI}, s{sI}, 1',
                f'  s_cmp_eq_u32 s{sI}, {R}',
                f'  s_cselect_b32 s{sDl}, s51, s52',
                f'  s_cselect_b32 s{sI}, 0, s{sI}']
    def ring_adv_v(sDl, regs):
        return [f'  v_add_u32 v{r}, s{sDl}, v{r}' for r in regs]

    def scale_d(t, d):
        p = t & 1
        r = S[p] + d
        dd = d % 12
        t0, t1 = (TMP[0], TMP[1]) if d % 2 == 0 else (TMP[2], TMP[3])
        return [f'  v_lshlrev_b32 v{t0}, 16, v{r}',
                f'  v_and_b32 v{t1}, s{sMask}, v{r}',
                f'  v_mul_f32 v{t0}, v{t0}, v{DW + 2*dd}',
                f'  v_mul_f32 v{t1}, v{t1}, v{DW + 2*dd + 1}',
                f'  v_cvt_pk_bf16_f32 v{r}, v{t0}, v{t1}']
    def ring_write(t, u):
        p = t & 1
        rg, q = u // 3, u % 3
        g.lgop(f'  ds_write_b128 v{vLdsW[rg]}, v[{S[p]+4*u}:{S[p]+4*u+3}] offset:{q*256}', ('RW', t, u))

    def scale_tile(t, key, dummy=False):
        for u in range(6):
            g.wait((key, u), vm=('L', t, u))
            for d in range(4*u, 4*u+4):
                for s in scale_d(t, d): e(s)
            ring_write(t, u)
            xload1(t + 2, u)
            if dummy: dummy_st(1)
        for s in ring_adv_s(sWrI, sDWr) + ring_adv_v(sDWr, vLdsW): e(s)

    def dummy_st(n=6):
        for q in range(n):
            g.vmop(f'  buffer_store_dwordx4 v[{OB[0]}:{OB[0]+3}], v{vLoad}, s[{sO}:{sO+3}], s{sOOB} offen', None)

    g.wait('w', vm=('W', 2))
    pstamp()
    for i in range(12):
        e(f'  v_lshlrev_b32 v{DW+2*i}, 16, v{160+i}')
        e(f'  v_and_b32 v{DW+2*i+1}, s{sMask}, v{160+i}')
    scale_tile(0, 'p0')
    for c in range(NB1, NB2): bload(c)
    scale_tile(1, 'p1')
    pstamp()
    XS = [XF, XF2]
    def bwrite(c, u):
        so = LDS_O + (c & 1) * 24576
        rg, q = u // 3, u % 3
        g.lgop(f'  ds_write_b128 v{vBW}, {breg(24*c+4*u)} offset:{so + rg*3072 + q*1024}')
    def trread(c, k):
        so = LDS_O + (c & 1) * 24576
        sl, t, hh = k // 6, (k // 2) % 3, k % 2
        b = ((2*c+sl)*3 + t)*4 + 2*hh
        g.lgop(f'  ds_read_b64_tr_b16 {breg(b, 2)}, v{vTr+t} offset:{so + (4*sl+hh)*3072}')
    def xread(c, k):
        sl, tl = k // 2, k % 2
        s = 2*c + sl
        x = XS[c & 1][2*tl + sl]
        g.lgop(f'  ds_read_b128 v[{x}:{x+3}], v{vLdsR[s & 7]} offset:{tl*TILE_B + (s >> 3)*256}')
    SC2 = int(opts.get('sc2', 4)); SC3 = int(opts.get('sc3', 8))
    last_scale = 2 + P - 1
    g.wait(('b', 0), vm=('B', 0, 5))
    for u in range(6): bwrite(0, u)
    e('  s_waitcnt lgkmcnt(0)')
    e('  s_barrier')
    def exchange(var):
      for c in range(13):
        if c in (1, 4, 8, 11): pstamp()
        GP = [[] for _ in range(12)]
        rg_ = [1, 3, 5, 7, 9, 11] if var == 0 else [0, 2, 4, 6, 8, 10]
        wg_ = [0, 2, 4, 6, 8, 10] if var == 0 else [1, 3, 5, 7, 9, 11]
        if c < 12:
            for k in range(12): GP[rg_[k // 4]].append(lambda k=k: trread(c, k))
            for k in range(4): GP[rg_[3]].append(lambda k=k: xread(c, k))
        if NB2 + c < 12:
            GP[rg_[4]].append(lambda: bload(NB2 + c, 0, 3))
            GP[rg_[5]].append(lambda: bload(NB2 + c, 3, 6))
        if c + 1 < 12:
            for u in range(6):
                GP[wg_[u]].append(lambda u=u: g.wait(('b', var, c + 1, u), vm=('B', c + 1, u)))
                GP[wg_[u]].append(lambda u=u: bwrite(c + 1, u))
        k = 0
        for sl in range(2):
            for tl in range(2):
                for tt in range(3):
                    if c > 0:
                        x = XS[(c - 1) & 1][2*tl + sl]
                        a = ACC[tl]
                        s = 2*(c - 1) + sl
                        cc = '0' if s == 0 else f'v[{a+16*tt}:{a+16*tt+15}]'
                        e(f'  v_mfma_f32_32x32x16_bf16 v[{a+16*tt}:{a+16*tt+15}], {breg((s*3+tt)*4)}, v[{x}:{x+3}], {cc}')
                    for it in GP[k]: it()
                    k += 1
        if c == SC2: scale_tile(2, ('p2', var), dummy=(last_scale - 2 <= 1))
        if c == SC3: scale_tile(3, ('p3', var), dummy=(last_scale - 3 <= 1))
        if c < 12:
            e('  s_waitcnt lgkmcnt(0)')
            e('  s_barrier')
    if unroll:
        exchange(only)
    elif VAR:
        sn = stamp_n[0]
        e(f'  s_cmp_ge_u32 s{sW}, 2')
        e('  s_cbranch_scc1 L_ex1')
        exchange(0)
        e('  s_branch L_exd')
        e('L_ex1:')
        stamp_n[0] = sn
        exchange(1)
        e('L_exd:')
    else:
        exchange(0)
    pstamp()
    e(f'  v_and_b32 v22, 31, v0')
    e(f'  v_bfe_u32 v23, v0, 5, 1')
    e(f'  v_mul_u32_u24 v{TMP[0]}, 0x300, v22')
    e(f'  v_and_b32 v22, 7, v22')
    e(f'  v_add_u32 v23, s41, v23')
    for m in range(4):
        e(f'  v_add_u32 v{TMP[1]}, {2*m}, v23')
        e(f'  v_xor_b32 v{TMP[1]}, v{TMP[1]}, v22')
        e(f'  v_lshl_add_u32 v{vOW[m]}, v{TMP[1]}, 4, v{TMP[0]}')
    for r in vLdsR: e(f'  v_add_u32 v{r}, {2*TILE_B}, v{r}')

    def rd(t, i):
        x = XF[i % 4]
        g.lgop(f'  ds_read_b128 v[{x}:{x+3}], v{vLdsR[i & 7]} offset:{(i >> 3)*256}', ('X', t, i))
    def epi_cvt(pa, m):
        a = ACC[pa] + 8*m
        return [f'  v_cvt_pk_bf16_f32 v{a+i}, v{a+2*i}, v{a+2*i+1}' for i in range(4)]
    def epi_wr(pa, m, po):
        a = ACC[pa] + 8*m
        g.lgop(f'  ds_write_b128 v{vOW[m & 3]}, v[{a}:{a+3}] offset:{LDS_O + po*TILE_B + (128 if m >= 4 else 0)}', ('OW', m))
    def out_read(t, u):
        o = OB[u & 1]
        rg, q = u // 3, u % 3
        g.lgop(f'  ds_read_b128 v[{o}:{o+3}], v{vOR[rg]} offset:{LDS_O + ((t^1)&1)*TILE_B + q*256}', ('O', t, u))
    def out_store(t, u, key):
        o = OB[u & 1]
        rg, q = u // 3, u % 3
        g.wait((key, 'o', u), lg=('O', t, u))
        g.vmop(f'  buffer_store_dwordx4 v[{o}:{o+3}], v{vLoad}, s[{sO}:{sO+3}], s{sOOB if opts.get("nost") else sSt} offen offset:{rg*3072+q*256}{NT_ST}', None)
        if u == 5: e(f'  s_add_u32 s{sSt}, s{sSt}, {STRIDE}')

    for m in range(6):
        for s in epi_cvt(0, m): e(s)
        epi_wr(0, m, 1)
    if P == 3:
        scale_tile(4, 'p4', dummy=True)
    e('  s_waitcnt lgkmcnt(0)')
    e('  s_barrier')
    for i in range(3): rd(2, i)
    stamp()
    pstamp()

    lab = [0]
    def iteration(t, var, st=False):
        p = t & 1
        kp = (p, var)
        ts = t + P
        GP = [[] for _ in range(72)]
        for u in range(6):
            b = 12 * u
            sc = [scale_d(ts, 4*u + k) for k in range(4)]
            cv = epi_cvt(p ^ 1, u)
            vw = lambda u=u: g.wait((kp, 's', u), vm=('L', ts, u))
            rw = lambda u=u: ring_write(ts, u)
            xl = lambda u=u: xload1(ts + 2, u)
            ew = lambda u=u: epi_wr(p ^ 1, u, p)
            orr = lambda u=u: out_read(t, u)
            ost = lambda u=u: out_store(t, u, kp)
            if var == 0:
                GP[b+0] += [vw] + sc[0]
                GP[b+1] += sc[1]
                GP[b+2] += [orr] + cv[:2]
                GP[b+3] += sc[2]
                GP[b+4] += sc[3]
                GP[b+5] += cv[2:]
                GP[b+6] += [rw, xl]
                GP[b+7] += [ew]
                GP[b+9] += [ost]
            else:
                GP[b+0] += [orr]
                GP[b+1] += cv
                GP[b+2] += []
                GP[b+3] += [ew]
                GP[b+4] += [ost]
                GP[b+5] += [vw] + sc[0][:2]
                GP[b+6] += sc[0][2:] + sc[1][:2]
                GP[b+7] += sc[1][2:] + sc[2][:2]
                GP[b+8] += sc[2][2:]
                GP[b+9] += sc[3]
                GP[b+10] += [rw, xl]
        a_s = 46 if var == 0 else 50
        GP[a_s] += ring_adv_s(sRdI, sDR)
        GP[56] += ring_adv_s(sWrI, sDWr) if var == 0 else []
        GP[59] += ring_adv_s(sWrI, sDWr) if var == 1 else []
        GP[58] += ring_adv_v(sDR, vLdsR[0:3])
        GP[62] += ring_adv_v(sDR, vLdsR[3:5]) if var == 1 else []
        GP[68] += ring_adv_v(sDR, vLdsR[3:6]) if var == 0 else []
        GP[70] += ring_adv_v(sDR, vLdsR[6:8]) + ring_adv_v(sDWr, vLdsW) if var == 0 else []
        GP[71] += ring_adv_v(sDR, vLdsR[5:8]) + ring_adv_v(sDWr, vLdsW) if var == 1 else []
        for i in range(24):
            if i + 3 < 24: rd(t, i + 3)
            else: rd(t + 1, i + 3 - 24)
            g.wait((kp, 'x', i), lg=('X', t, i))
            x = XF[i % 4]
            a = ACC[p]
            for tt in range(3):
                c = '0' if i == 0 else f'v[{a+16*tt}:{a+16*tt+15}]'
                if not opts.get('nomfma'): e(f'  v_mfma_f32_32x32x16_bf16 v[{a+16*tt}:{a+16*tt+15}], {breg((i*3+tt)*4)}, v[{x}:{x+3}], {c}')
                for it in GP[3*i + tt]:
                    if callable(it): it()
                    else: e(it)
        g.wait((kp, 'end'), lg=('RW', ts, 5) if var == 1 else ('OW', 5))
        if st and DBG:
            lab[0] += 1
            e(f'  s_cmp_lg_u32 s62, 1')
            e(f'  s_cbranch_scc1 L_nd{lab[0]}')
            e('  s_sub_u32 s26, s60, s64')
            e(f'  v_mov_b32 v{TMP[0]}, s26')
            e(f'  v_mov_b32 v{TMP[1]}, s63')
            e(f'  buffer_store_dword v{TMP[0]}, v{TMP[1]}, s[56:59], 0 offen')
            e('  s_add_u32 s63, s63, 4')
            e('  s_memrealtime s[60:61]')
            e(f'L_nd{lab[0]}:')
        e('  s_barrier')

    if DBG:
        e('  s_load_dwordx2 s[24:25], s[0:1], 32')
        e('  s_memrealtime s[60:61]')
        e('  s_waitcnt lgkmcnt(0)')
        e('  s_mov_b32 s56, s24')
        e('  s_and_b32 s57, s25, 0xffff')
        e('  s_mov_b32 s58, 256')
        e('  s_mov_b32 s59, 0x00020000')
        e(f'  s_mov_b32 s63, {4*stamp_n[0]}')
        e(f'  s_cmp_eq_u32 s2, {DBG-1}')
        e('  s_cselect_b32 s62, 1, 0')
        e(f'  s_cmp_eq_u32 s{sW}, {int(opts.get("dbgw", 0))}')
        e('  s_cselect_b32 s62, s62, 0')
    if unroll:
        for t in range(2, NTILE):
            iteration(t, only)
    else:
        e(f'  s_mov_b32 s{sCnt}, 8')
        if VAR:
            e(f'  s_cmp_ge_u32 s{sW}, 2')
            e('  s_cbranch_scc1 L_loop1')
        for var in range(2 if VAR else 1):
            e(f'L_loop{var}:')
            iteration(0, var)
            iteration(1, var, True)
            e(f'  s_sub_u32 s{sCnt}, s{sCnt}, 1')
            e(f'  s_cmp_lg_u32 s{sCnt}, 0')
            e(f'  s_cbranch_scc1 L_loop{var}')
            if VAR and var == 0: e('  s_branch L_tail')
        e('L_tail:')
    t = NTILE
    out_read(t, 0); out_read(t, 1)
    e('  s_nop 7')
    for m in range(6):
        for s in epi_cvt(1, m): e(s)
        epi_wr(1, m, 0)
    for u in range(6):
        out_store(t, u, 'T')
        if u + 2 < 6: out_read(t, u + 2)
    e('  s_waitcnt lgkmcnt(0)')
    e('  s_barrier')
    regs = [XF[0], XF[1], XF[2], XF[3], OB[0], OB[1]]
    for u in range(6):
        rg, q = u // 3, u % 3
        e(f'  ds_read_b128 v[{regs[u]}:{regs[u]+3}], v{vOR[rg]} offset:{LDS_O + q*256}')
    for u in range(6):
        rg, q = u // 3, u % 3
        e(f'  s_waitcnt lgkmcnt({5-u})')
        e(f'  buffer_store_dwordx4 v[{regs[u]}:{regs[u]+3}], v{vLoad}, s[{sO}:{sO+3}], s{sOOB if opts.get("nost") else sSt} offen offset:{rg*3072+q*256}{NT_ST}')
    if DBG:
        e('  s_waitcnt vmcnt(0)')
        e('  s_memrealtime s[54:55]')
        e('  s_memtime s[98:99]')
        e('  s_waitcnt lgkmcnt(0)')
        e('  s_cmp_lg_u32 s62, 1')
        e('  s_cbranch_scc1 L_done')
        e(f'  v_mov_b32 v{TMP[0]}, 0')
        for i in range(stamp_n[0]):
            e(f'  s_sub_u32 s26, s{64+2*i}, s64')
            e(f'  v_mov_b32 v{TMP[1]}, s26')
            e(f'  buffer_store_dword v{TMP[1]}, v{TMP[0]}, s[56:59], 0 offen offset:{4*i}')
        for (sr, off) in (('s60, s64', 52), ('s54, s64', 56), ('s98, s96', 60)):
            e(f'  s_sub_u32 s26, {sr}')
            e(f'  v_mov_b32 v{TMP[1]}, s26')
            e(f'  buffer_store_dword v{TMP[1]}, v{TMP[0]}, s[56:59], 0 offen offset:{off}')
    e('L_done:')
    e('  s_endpgm')
    e('.section .rodata,"a"')
    e('.p2align 6')
    e('.amdhsa_kernel standalone__depthwise_separable__vision_kernel')
    e('  .amdhsa_next_free_vgpr 512')
    e('  .amdhsa_next_free_sgpr 100')
    e('  .amdhsa_accum_offset 256')
    e('  .amdhsa_group_segment_fixed_size 0')
    e('  .amdhsa_kernarg_size 48')
    e('  .amdhsa_user_sgpr_count 2')
    e('  .amdhsa_user_sgpr_kernarg_segment_ptr 1')
    e('  .amdhsa_system_sgpr_workgroup_id_x 1')
    e('  .amdhsa_float_denorm_mode_32 3')
    e('.end_amdhsa_kernel')

if __name__ == '__main__':
    out = sys.argv[1]
    opts = dict(a.split('=', 1) for a in sys.argv[2:])
    for k in ('nt_ld', 'nt_st'):
        if k in opts:
            opts[k] = ' ' + opts[k].replace('+', ' ')
    open(out, 'w').write(gen(opts))
```

```python
import sys, re
from gen3 import G, HDR
from gen5 import regs_of

def hazard_check(L):
    ins = [l.strip() for l in L if l.startswith('  ') and not l.strip().startswith(';')]
    hist = []; st = 0; last_valu = []
    for l in ins:
        op = l.split()[0]
        toks = [t.strip(',') for t in l.split()[1:]]
        allr = set()
        for t in toks: allr |= regs_of(t)
        if op.startswith('v_mfma'):
            d = regs_of(toks[0]); a = regs_of(toks[1]); b = regs_of(toks[2]); c = regs_of(toks[3])
            for (s0, r) in last_valu:
                if st - s0 - 1 < 2 and (r & (a | b | c)): raise Exception(f'VALU->MFMA hazard: {l}')
            for (s0, dd, cc) in hist:
                if st - s0 - 1 < 8 and (dd & (a | b)): raise Exception(f'MFMA D->A/B hazard: {l}')
                if st - s0 - 1 < 6 and (dd & c) and dd != c: raise Exception(f'MFMA D->C overlap hazard: {l}')
            hist.append((st, d, c))
        elif op.startswith('v_') or op.startswith('ds_') or op.startswith('buffer_'):
            for (s0, dd, cc) in hist:
                if st - s0 - 1 < 8 and (dd & allr): raise Exception(f'MFMA D->use hazard dist {st-s0-1}: {l}')
            if op.startswith('v_'):
                w = regs_of(toks[0])
                for (s0, dd, cc) in hist:
                    if st - s0 - 1 < 3 and (cc & w): raise Exception(f'MFMA C WAR hazard: {l}')
                last_valu.append((st, w)); last_valu = last_valu[-4:]
        hist = [h for h in hist if st - h[0] < 24]
        st += int(toks[0]) + 1 if op == 's_nop' else 1

def gen(opts):
    g = G()
    for v in range(2):
        g.reset('collect')
        build(g, opts, unroll=True, only=v)
        hazard_check(g.L)
    g.reset('emit')
    build(g, opts, unroll=False)
    L = g.L
    abl = opts.get('abl', '')
    if abl:
        i0 = L.index('L_loop0:'); i1 = L.index('L_tail:')
        def keep(l):
            s = l.strip()
            if 'S' in abl and (s.startswith('v_lshlrev_b32 v18') or s.startswith('v_lshlrev_b32 v20') or s.startswith('v_and_b32') or s.startswith('v_mul_f32') or re.match(r'v_cvt_pk_bf16_f32 v(4[89]|[5-8]\d|9[0-5]),', s)): return False
            if 'O' in abl and (s.startswith('ds_write_b128 v8') or s.startswith('ds_write_b128 v9') or s.startswith('ds_read_b128 v[208') or s.startswith('ds_read_b128 v[212')): return False
            if 'T' in abl and s.startswith('buffer_store') and 's[56:59]' not in s: return False
            if 'L' in abl and s.startswith('buffer_load'): return False
            if 'H' in abl and s.startswith('v_mfma') and int(re.search(r'v\[(\d+):', s).group(1)) % 8 == 4: return False
            return True
        L = L[:i0] + [l for l in L[i0:i1] if keep(l)] + L[i1:]
    return '\n'.join(L) + '\n'

def build(g, opts, unroll, only=None):
    NT_LD = opts.get('nt_ld', ' nt')
    NT_ST = opts.get('nt_st', '')
    DBG = int(opts.get('dbg', 0)); PD = int(opts.get('pdbg', 0)); AMP = opts.get('amp')
    R = int(opts.get('R', 4)); P = int(opts.get('P', 2))
    e = g.e
    TILE_B = 32 * 768; NTILE = 18; STRIDE = 256 * TILE_B
    MAPR = opts.get('map') == 'r'
    if MAPR: STRIDE = 32 * TILE_B
    LDS_X = 0; LDS_O = R * TILE_B; LDS_TOTAL = LDS_O + 2 * TILE_B
    NS = 4
    OOB = 113246208
    vGL = [1, 2]; vLdsW = [3, 4, 5, 6, 7, 8]; vLdsR = [9, 10, 11, 12]; vOW = [13, 14]
    vBL = [15, 16, 17]; vTr = 22; vOR = [15, 16, 17, 22, 216, 0]
    vGL = [1, 2, 23]; vLoad = vGL[0]; sLd1 = 53; sSt1 = 23
    TMP = [18, 19, 20, 21]
    DW = 24; S = [48, 72]; XF = [96, 100, 104, 108]; ACC = [112, 160]
    OB = [208, 212]; XF2 = [208, 212, 216, 220]; BV = 224
    T = list(range(176, 200))
    sX, sO, sP, sD = 4, 8, 12, 16
    sW, sLd, sSt, sCnt, sMask, sT0 = 20, 21, 22, 32, 33, 34
    sRdI, sWrI, sDR, sDWr, sOOB = 47, 48, 49, 55, 50

    def breg(i, n=4):
        return f'a[{i}:{i+n-1}]' if i < 256 else f'v[{BV+i-256}:{BV+i-256+n-1}]'
    stamp_n = [0]; pn = [0]
    def stamp(force=False):
        if DBG and (force or not PD or stamp_n[0] == 0):
            e(f'  s_memrealtime s[{64+2*stamp_n[0]}:{65+2*stamp_n[0]}]'); stamp_n[0] += 1
    def pstamp():
        if PD: stamp(True)
        pn[0] += 1
        if AMP == f'p{pn[0]}': e('  s_memrealtime s[60:61]')
    def run(items):
        for it in items:
            if callable(it): it()
            else: e(it)

    e(HDR.rstrip('\n'))
    e(f'; @launch grid=(256,1,1) block=(256,1,1) lds={LDS_TOTAL}')
    e('.amdgcn_target "amdgcn-amd-amdhsa--gfx950"')
    e('.text')
    e('.globl standalone__depthwise_separable__vision_kernel')
    e('.p2align 8')
    e('.type standalone__depthwise_separable__vision_kernel,@function')
    e('standalone__depthwise_separable__vision_kernel:')
    e('  s_cmp_ge_u32 s2, 256')
    e('  s_cbranch_scc1 L_done')
    stamp()
    if AMP: e('  s_memrealtime s[64:65]')
    if DBG or AMP == 'c': e('  s_memtime s[96:97]')
    if opts.get('icn'):
        for rep in range(int(opts.get('icr', 1))):
            pass
        e('  s_mov_b32 s30, 0')
        e('L_ic:')
        for i in range(int(opts['icn'])):
            e(f'  v_lshl_add_u32 v{40 + i % 8}, v2, 1, v3')
        e('  s_add_u32 s30, s30, 1')
        e(f'  s_cmp_lt_u32 s30, {int(opts.get("icr", 1))}')
        e('  s_cbranch_scc1 L_ic')
        e('  s_memrealtime s[60:61]')
    e('  s_load_dwordx4 s[24:27], s[0:1], 0')
    e('  s_load_dwordx4 s[28:31], s[0:1], 16')
    if int(opts.get('cw', 0)):
        e('  s_getpc_b64 s[40:41]')
        e('L_pc:')
        e('  s_lshr_b32 s42, s2, 3')
        e('  s_lshl_b32 s42, s42, 10')
        e('  v_lshlrev_b32 v4, 2, v0')
        e('  v_add_u32 v4, s42, v4')
        e('  v_min_u32 v4, L_done-L_pc, v4')
        e('  v_mov_b32 v5, s41')
        e('  v_add_co_u32 v4, vcc, s40, v4')
        e('  v_addc_co_u32 v5, vcc, 0, v5, vcc')
        g.vmop('  global_load_dword v6, v[4:5], off')
    lane, lo4, hi2, row, rowb = T[0], T[1], T[2], T[3], T[4]
    e(f'  v_lshrrev_b32 v{T[5]}, 6, v0')
    e(f'  v_and_b32 v{lane}, 63, v0')
    e(f'  v_readfirstlane_b32 s{sW}, v{T[5]}')
    e(f'  v_and_b32 v{lo4}, 15, v{lane}')
    e(f'  v_lshrrev_b32 v{hi2}, 4, v{lane}')
    e(f'  s_mov_b32 s{sMask}, 0xffff0000')
    e(f'  s_lshl_b32 s{sT0}, s{sW}, 3')
    e(f'  v_add_u32 v{row}, s{sT0}, v{hi2}')
    e(f'  v_mul_u32_u24 v{rowb}, 0x300, v{row}')
    e(f'  v_lshlrev_b32 v{T[6]}, 4, v{lo4}')
    if MAPR:
        e('  s_and_b32 s38, s2, 7')
        e('  s_mul_i32 s38, s38, 576')
        e('  s_lshr_b32 s39, s2, 3')
        e('  s_add_u32 s38, s38, s39')
        e(f'  s_mul_i32 s{sLd}, s38, {TILE_B}')
        e(f'  s_add_u32 s84, s{sLd}, {18*STRIDE}')
    elif opts.get('map') == 'x':
        e('  s_and_b32 s38, s2, 7')
        e('  s_lshl_b32 s38, s38, 5')
        e('  s_lshr_b32 s39, s2, 3')
        e('  s_add_u32 s38, s38, s39')
        e(f'  s_mul_i32 s{sLd}, s38, {TILE_B}')
    else:
        e(f'  s_mul_i32 s{sLd}, s2, {TILE_B}')
    e(f'  s_mov_b32 s{sSt}, s{sLd}')
    PERM = int(opts.get('perm', 0))
    idx = 's38' if opts.get('map') == 'x' else 's2'
    e(f'  s_mul_i32 s70, {idx}, 0xaaab')
    e('  s_lshr_b32 s70, s70, 17')
    e('  s_mul_i32 s71, s70, 3')
    e(f'  s_sub_u32 s71, {idx}, s71')
    e('  s_and_b32 s79, s70, 1')
    if not PERM:
        e('  s_mov_b32 s71, 0')
        e('  s_mov_b32 s79, 0')
    if PERM == 2: e('  s_mov_b32 s79, 0')
    for j in range(3):
        e(f'  s_add_u32 s72, s71, {j}')
        e('  s_cmp_ge_u32 s72, 3')
        e('  s_cselect_b32 s73, 3, 0')
        e('  s_sub_u32 s72, s72, s73')
        e(f'  s_lshl_b32 s{76+j}, s72, 8')
    e('  s_mul_i32 s82, s79, 768')
    e('  s_sub_u32 s83, 768, s82')
    e('  s_mul_i32 s72, s79, 12288')
    e(f'  s_add_u32 s{sLd}, s{sLd}, s72')
    e('  s_mul_i32 s72, s79, 24576')
    e('  s_sub_u32 s80, 12288, s72')
    e(f'  s_sub_u32 s81, {STRIDE}, s80')
    for j in range(3):
        e(f'  v_add_u32 v{vGL[j]}, s{76+j}, v0')
        e(f'  v_lshlrev_b32 v{vGL[j]}, 4, v{vGL[j]}')
    e(f'  s_mov_b32 s{sOOB}, {OOB}')
    e('  s_lshr_b32 s36, s2, 3')
    e('  s_mul_i32 s36, s36, 9216')
    e(f'  s_mul_i32 s37, s{sW}, 2304')
    e('  s_add_u32 s36, s36, s37')
    e(f'  v_lshlrev_b32 v{T[7]}, 4, v{lane}')
    e('  s_waitcnt lgkmcnt(0)')
    for (sd, lo, nbytes) in ((sX, 24, 113246208), (sD, 26, 768), (sP, 28, 294912), (sO, 30, 113246208)):
        e(f'  s_mov_b32 s{sd}, s{lo}')
        e(f'  s_and_b32 s{sd+1}, s{lo+1}, 0xffff')
        e(f'  s_mov_b32 s{sd+2}, {nbytes}')
        e(f'  s_mov_b32 s{sd+3}, 0x00020000')

    def xload1(t, u):
        p = t & 1; rg, q = u // 3, u % 3
        g.vmop(f'  buffer_load_dwordx4 v[{S[p]+4*u}:{S[p]+4*u+3}], v{vGL[u % 3]}, s[{sX}:{sX+3}], s{sOOB if opts.get("nold") else sLd} offen{NT_LD}', ('L', t, u))
        if u == 2: e(f'  s_add_u32 s{sLd}, s{sLd}, s80')
        if u == 5:
            e(f'  s_add_u32 s{sLd}, s{sLd}, s81')
            if MAPR:
                e(f'  s_cmp_ge_u32 s{sLd}, s84')
                e(f'  s_cselect_b32 s{sLd}, s{sOOB}, s{sLd}')
    def xload(t):
        for u in range(6): xload1(t, u)
    def bload(h):
        e(f'  s_add_u32 m0, s45, {((h // 2) % NS) * 6144 + (h & 1) * 3072}')
        e(f'  s_mov_b32 s46, {h*12288}')
        for i in range(3):
            g.vmop(f'  buffer_load_dwordx4 v{vBL[i]}, s[{sP}:{sP+3}], s46 offen offset:{i*1024} lds', ('B', h, i))

    g.vmop(f'  buffer_load_dwordx4 v[{XF[0]}:{XF[0]+3}], v{T[7]}, s[{sP}:{sP+3}], s36 offen')
    g.vmop(f'  buffer_load_dwordx4 v[{XF[1]}:{XF[1]+3}], v{T[7]}, s[{sP}:{sP+3}], s36 offen offset:1024')
    g.vmop(f'  buffer_load_dwordx4 v[{XF[2]}:{XF[2]+3}], v{T[6]}, s[{sP}:{sP+3}], s36 offen offset:2048')
    e(f'  s_mul_i32 s44, s{sW}, 192')
    for i in range(3):
        e(f'  v_add_u32 v{T[8]}, {64*i}, v{lane}')
        e(f'  v_mul_u32_u24 v{T[9]}, 0xaaab, v{T[8]}')
        e(f'  v_lshrrev_b32 v{T[9]}, 19, v{T[9]}')
        e(f'  v_mul_u32_u24 v{T[10]}, 12, v{T[9]}')
        e(f'  v_sub_u32 v{T[10]}, v{T[8]}, v{T[10]}')
        e(f'  v_mul_u32_u24 v{T[9]}, 0x300, v{T[9]}')
        e(f'  v_lshl_add_u32 v{T[9]}, v{T[10]}, 4, v{T[9]}')
        e(f'  v_add_u32 v{vBL[i]}, s44, v{T[9]}')
        if i: e(f'  v_subrev_u32 v{vBL[i]}, {1024*i}, v{vBL[i]}')
    e(f'  s_mul_i32 s45, s{sW}, {NS*6144}')
    e(f'  s_add_u32 s45, s45, {2*TILE_B}')
    PA = 0
    PB0 = int(opts.get('pb0', 8)); PB = 8; PA2 = 1
    PA = 4
    for h in range(2*PA): bload(h)
    for q in range(3):
        e(f'  v_add_u32 v{T[8]}, s{76+q}, v0')
        e(f'  v_mul_u32_u24 v{T[9]}, 0xaaab, v{T[8]}')
        e(f'  v_lshrrev_b32 v{T[9]}, 21, v{T[9]}')
        e(f'  v_mul_u32_u24 v{T[9]}, 48, v{T[9]}')
        e(f'  v_sub_u32 v{T[8]}, v{T[8]}, v{T[9]}')
        e(f'  v_lshlrev_b32 v{T[8]}, 4, v{T[8]}')
        g.vmop(f'  buffer_load_dwordx4 v[{160+4*q}:{160+4*q+3}], v{T[8]}, s[{sD}:{sD+3}], 0 offen', ('W', q))
    for h in range(2*PA, 8): bload(h)
    def lin_addr(dst, u, lanereg, t0, t1, t2, mask, base, swap=False):
        e(f'  v_add_u32 v{t0}, s{76 + u % 3}, v{lanereg}')
        if swap: e(f'  v_add_u32 v{t0}, s{83 if u >= 3 else 82}, v{t0}')
        elif u >= 3: e(f'  v_add_u32 v{t0}, 768, v{t0}')
        e(f'  v_mul_u32_u24 v{t1}, 0xaaab, v{t0}')
        e(f'  v_lshrrev_b32 v{t1}, 21, v{t1}')
        e(f'  v_mul_u32_u24 v{t2}, 48, v{t1}')
        e(f'  v_sub_u32 v{t0}, v{t0}, v{t2}')
        e(f'  v_and_b32 v{t2}, {mask}, v{t1}')
        e(f'  v_xor_b32 v{t0}, v{t0}, v{t2}')
        e(f'  v_mul_u32_u24 v{t1}, 0x300, v{t1}')
        e(f'  v_lshl_add_u32 v{t0}, v{t0}, 4, v{t1}')
        e(f'  v_add_u32 v{dst}, {base}, v{t0}')
    def late_setup():
        for u in range(6): lin_addr(vLdsW[u], u, 0, T[8], T[9], T[10], 15, LDS_X, True)
        e(f'  v_mul_u32_u24 v{T[10]}, 0x300, v{lo4}')
        e(f'  v_xor_b32 v{T[11]}, v{hi2}, v{lo4}')
        e(f'  v_lshl_add_u32 v{vLdsR[0]}, v{T[11]}, 4, v{T[10]}')
        e(f'  v_add_u32 v{vLdsR[0]}, {LDS_X}, v{vLdsR[0]}')
        for s in range(1, 4): e(f'  v_xor_b32 v{vLdsR[s]}, {s*64}, v{vLdsR[0]}')
        e(f'  s_mul_i32 s41, s{sW}, 12')
        e(f'  v_and_b32 v{T[11]}, 7, v{lo4}')
        for u in range(2):
            e(f'  v_add_u32 v{T[12]}, s41, v{hi2}')
            e(f'  v_add_u32 v{T[12]}, {4*u}, v{T[12]}')
            e(f'  v_xor_b32 v{T[12]}, v{T[12]}, v{T[11]}')
            e(f'  v_lshl_add_u32 v{vOW[u]}, v{T[12]}, 4, v{T[10]}')
            e(f'  v_add_u32 v{vOW[u]}, {LDS_O}, v{vOW[u]}')
    if not int(opts.get('late', 1)):
        late_setup()
        late_setup = lambda: None
    e(f'  v_bfe_u32 v{T[12]}, v{lane}, 2, 2')
    e(f'  v_and_b32 v{T[13]}, 3, v{lane}')
    e(f'  v_lshl_add_u32 v{T[14]}, v{hi2}, 3, v{T[12]}')
    e(f'  v_mul_u32_u24 v{T[14]}, 192, v{T[14]}')
    e(f'  v_lshl_add_u32 v{T[14]}, v{T[13]}, 4, v{T[14]}')
    e(f'  v_add_u32 v{vTr}, s45, v{T[14]}')
    e(f'  s_mov_b32 s{sRdI}, 0')
    e(f'  s_mov_b32 s{sWrI}, 0')
    e(f'  s_mov_b32 s51, {-(R-1)*TILE_B & 0xffffffff}')
    e(f'  s_mov_b32 s52, {TILE_B}')

    def ring_adv_s(sI, sDl):
        return [f'  s_add_u32 s{sI}, s{sI}, 1', f'  s_cmp_eq_u32 s{sI}, {R}',
                f'  s_cselect_b32 s{sDl}, s51, s52', f'  s_cselect_b32 s{sI}, 0, s{sI}']
    def ring_adv_v(sDl, regs):
        return [f'  v_add_u32 v{r}, s{sDl}, v{r}' for r in regs]
    def scale_d(t, d):
        r = S[t & 1] + d; dd = d % 12
        if opts.get('fold'): return []
        t0, t1 = (TMP[0], TMP[1]) if d % 2 == 0 else (TMP[2], TMP[3])
        return [f'  v_lshlrev_b32 v{t0}, 16, v{r}', f'  v_and_b32 v{t1}, s{sMask}, v{r}',
                f'  v_mul_f32 v{t0}, v{t0}, v{DW + 2*dd}', f'  v_mul_f32 v{t1}, v{t1}, v{DW + 2*dd + 1}',
                f'  v_cvt_pk_bf16_f32 v{r}, v{t0}, v{t1}']
    def ring_write(t, u):
        p = t & 1; rg, q = u // 3, u % 3
        g.lgop(f'  ds_write_b128 v{vLdsW[u]}, v[{S[p]+4*u}:{S[p]+4*u+3}]', ('RW', t, u))
    def dummy_st():
        g.vmop(f'  buffer_store_dwordx4 v[{TMP[0]}:{TMP[0]+3}], v{vLoad}, s[{sO}:{sO+3}], s{sOOB} offen', None)
    def scale_items(t, key, dummy=False, noload=False):
        Q = []
        for u in range(6):
            Q.append(lambda u=u: g.wait((key, u), vm=('L', t, u)))
            for d in range(4*u, 4*u+4): Q += scale_d(t, d)
            Q.append(lambda u=u: ring_write(t, u))
            if not noload: Q.append(lambda u=u: xload1(t + 2, u))
            if dummy: Q.append(dummy_st)
        return Q + ring_adv_s(sWrI, sDWr) + ring_adv_v(sDWr, vLdsW)
    def bitems(ks):
        so = (ks % NS) * 6144
        it = [lambda: g.wait(('b', ks), vm=('B', 2*ks + 1, 2))]
        for nt in range(6):
            for hh in range(2):
                it.append(lambda nt=nt, hh=hh: g.lgop(f'  ds_read_b64_tr_b16 {breg((ks*6+nt)*4 + 2*hh, 2)}, v{vTr} offset:{so + hh*768 + (nt >> 1)*64 + (nt & 1)*8}', ('TR', ks)))
        return it

    A0, A1 = ACC[0], ACC[0] + 24
    def bunit(ks):
        run(bitems(ks))
        if ks >= 1 and ks + 3 < 12:
            g.wait(('bf', ks), lg=('TR', ks - 1))
            bload(2*(ks + 3)); bload(2*(ks + 3) + 1)
    XB = int(opts.get('xb', 8)); SB0 = int(opts.get('sb0', 11)); SB1 = int(opts.get('sb1', 11))
    for ks in range(12):
        bunit(ks)
        if ks == XB: xload(0); xload(1)
        if ks == 1: late_setup()
        if ks == 4:
            g.wait('w', vm=('W', 2))
            for i in range(12):
                e(f'  v_lshlrev_b32 v{DW+2*i}, 16, v{160+i}')
                e(f'  v_and_b32 v{DW+2*i+1}, s{sMask}, v{160+i}')
        if ks in (0, 4, 8, 11): pstamp()
        if ks == 11:
            for u in range(6): lin_addr(vOR[u], u, 0, TMP[0], TMP[1], TMP[2], 7, LDS_O)
        if ks == SB0: run(scale_items(0, 'p0', True))
        if ks == SB1: run(scale_items(1, 'p1', True))
    if opts.get('fold'):
        e('  v_mbcnt_lo_u32_b32 v217, -1, 0')
        e('  v_mbcnt_hi_u32_b32 v217, -1, v217')
        e('  v_lshrrev_b32 v217, 4, v217')
        e('  v_lshlrev_b32 v217, 4, v217')
        e('  s_waitcnt lgkmcnt(0)')
        for ks in range(12):
            e(f'  buffer_load_dwordx4 v[200:203], v217, s[{sD}:{sD+3}], 0 offen offset:{64*ks}')
            e('  s_waitcnt vmcnt(0)')
            for j in range(4):
                e(f'  v_lshlrev_b32 v{208+2*j}, 16, v{200+j}')
                e(f'  v_and_b32 v{209+2*j}, s{sMask}, v{200+j}')
            for i in range(24):
                r = ks*24 + i; j = i % 4
                if r < 256: e(f'  v_accvgpr_read_b32 v204, a{r}')
                else: e(f'  v_mov_b32 v204, v{BV+r-256}')
                e(f'  v_lshlrev_b32 v205, 16, v204')
                e(f'  v_and_b32 v206, s{sMask}, v204')
                e(f'  v_mul_f32 v205, v205, v{208+2*j}')
                e(f'  v_mul_f32 v206, v206, v{209+2*j}')
                e(f'  v_cvt_pk_bf16_f32 v204, v205, v206')
                if r < 256: e(f'  v_accvgpr_write_b32 a{r}, v204')
                else: e(f'  v_mov_b32 v{BV+r-256}, v204')
        e('  s_nop 4')
    pstamp()

    def rd(t, i):
        x = XF[i % 4]; mt, ks = i // 12, i % 12
        g.lgop(f'  ds_read_b128 v[{x}:{x+3}], v{vLdsR[ks & 3]} offset:{mt*12288 + (ks >> 2)*256}', ('X', t, i))
    sStN = 23
    def epi_cvt(mt, u):
        a = (A1 if mt else A0) + 8*u
        return [f'  v_cvt_pk_bf16_f32 v{a+i}, v{a+2*i}, v{a+2*i+1}' for i in range(4)]
    def epi_wr(mt, u, po):
        a = (A1 if mt else A0) + 8*u
        g.lgop(f'  ds_write_b128 v{vOW[u & 1]}, v[{a}:{a+3}] offset:{po*TILE_B + mt*12288 + (u >> 1)*128}', ('OW', mt, u))
    BST = int(opts.get('bst', 0)); BLD = int(opts.get('bld', 0))
    def ob(u): return 160 + 4*u if BST else OB[u & 1]
    def out_read(t, u):
        o = ob(u); rg, q = u // 3, u % 3
        g.lgop(f'  ds_read_b128 v[{o}:{o+3}], v{vOR[u]} offset:{((t^1)&1)*TILE_B}', ('O', t, u))
    MIX = opts.get('mix')
    def stfl(t, u):
        if MIX == 't': return ' nt' if (t & 1) else NT_ST
        if MIX == 'u': return ' nt' if (u >= 3) else NT_ST
        if MIX == '3': return ' nt' if (u % 3 == 2) else NT_ST
        if MIX == '23': return ' nt' if (u % 3 != 2) else NT_ST
        return NT_ST
    def out_store(t, u, key):
        o = ob(u); rg, q = u // 3, u % 3
        g.wait((key, 'o', u), lg=('O', t, u))
        g.vmop(f'  buffer_store_dwordx4 v[{o}:{o+3}], v{vGL[u % 3]}, s[{sO}:{sO+3}], s{sSt if u < 3 else sSt1} offen{stfl(t, u)}', None)
        if u == 5:
            e(f'  s_add_u32 s{sSt1}, s{sSt}, 12288')
            e(f'  s_mov_b32 s{sSt}, s53')
            e(f'  s_add_u32 s53, s53, {STRIDE}')

    e(f'  s_mov_b32 s53, s{sSt}')
    e(f'  s_mov_b32 s{sSt}, s{sOOB}')
    e(f'  s_mov_b32 s{sSt1}, s{sOOB}')
    e('  s_waitcnt lgkmcnt(0)')
    e('  s_barrier')
    for i in range(3): rd(0, i)
    stamp(); pstamp()

    lab = [0]
    WGAP = int(opts.get('wgap', 1))
    def iteration(t, var, st=False):
        p = t & 1; kp = (p, var); ts = t + P
        GP = [[] for _ in range(144)]
        for u in range(6):
            sc = sum((scale_d(ts, 4*u + k) for k in range(4)), [])
            emt, eu = (1, u) if u < 3 else (0, u - 3)
            cv = epi_cvt(emt, eu)
            vw = lambda u=u: g.wait((kp, 's', u), vm=('L', ts, u))
            rw = ('W', lambda u=u: ring_write(ts, u))
            W64 = int(opts.get('w64', 0))
            def rw64(u, hh):
                r = S[ts & 1] + 4*u + 2*hh
                g.lgop(f'  ds_write_b64 v{vLdsW[u]}, v[{r}:{r+1}] offset:{8*hh}', ('RW', ts, u))
            def ew64(mt, u, hh):
                a = (A1 if mt else A0) + 8*u + 2*hh
                g.lgop(f'  ds_write_b64 v{vOW[u & 1]}, v[{a}:{a+1}] offset:{p*TILE_B + mt*12288 + (u >> 1)*128 + 8*hh}', ('OW', mt, u))
            xl = lambda u=u: xload1(ts + 2, u)
            ew = ('W', lambda emt=emt, eu=eu: epi_wr(emt, eu, p))
            orr = lambda u=u: out_read(t, u)
            ost = lambda u=u: out_store(t, u, kp)
            extra = []
            if u == 3: extra = ring_adv_s(sRdI, sDR)
            if u == 0: extra = ring_adv_s(sWrI, sDWr)
            if BST or BLD:
                orl = [orr]; osl = [ost]; xll = [xl]
                if BST:
                    g0 = BST - 1
                    orl = [lambda k=k: out_read(t, k) for k in range(6)] if u == g0 else []
                    osl = [('F', lambda k=k: out_store(t, k, kp)) for k in range(6)] if u == g0 else []
                if BLD:
                    xll = [('F', lambda k=k: xload1(ts + 2, k)) for k in range(6)] if u == 5 else []
                seq = [('F', vw)] + orl + sc + [rw] + xll + cv + [ew] + osl + [('F', x) for x in extra]
            elif W64:
                seq = ([('F', vw)] + sc[:10] + [('V', lambda u=u: rw64(u, 0))] + [orr] + sc[10:] + [('V', lambda u=u: rw64(u, 1)), xl]
                       + cv[:2] + [('V', lambda emt=emt, eu=eu: ew64(emt, eu, 0))] + cv[2:] + [('V', lambda emt=emt, eu=eu: ew64(emt, eu, 1)), ost] + [('F', x) for x in extra])
            elif var == 0:
                seq = [('F', vw)] + sc[:10] + [orr] + sc[10:] + [rw, xl] + cv + [ew, ost] + [('F', x) for x in extra]
            else:
                seq = [orr] + [('F', x) for x in extra] + [('F', vw)] + sc[:7] + cv + [ew, ost] + sc[7:] + [rw, xl]
            gi = 24 * u; cnt = 0
            def nextgap(gi):
                gi += 1
                while gi % 6 == 5: gi += 1
                return gi
            for it in seq:
                if isinstance(it, tuple) and it[0] == 'F':
                    GP[min(gi, 24*u + 22)].append(it[1]); continue
                if isinstance(it, tuple) and it[0] == 'V':
                    if cnt: gi = nextgap(gi)
                    GP[gi].append(it[1]); gi = nextgap(gi); cnt = 0; continue
                if isinstance(it, tuple) and it[0] == 'W':
                    if cnt: gi = nextgap(gi)
                    GP[gi].append(it[1])
                    gi = nextgap(gi)
                    for _ in range(WGAP):
                        if gi % 6 != 0: gi = nextgap(gi)
                    cnt = 0; continue
                GP[gi].append(it); cnt += 1
                if cnt == 2: gi = nextgap(gi); cnt = 0
            assert gi <= 24 * u + 24, (var, u, gi)
        GP[6*20 + 5] += ring_adv_v(sDR, vLdsR[0:1])
        GP[6*21 + 5] += ring_adv_v(sDR, vLdsR[1:2])
        GP[6*22 + 5] += ring_adv_v(sDR, vLdsR[2:3])
        GP[143] += ring_adv_v(sDR, vLdsR[3:4]) + ring_adv_v(sDWr, vLdsW[5:6])
        for u in range(5): GP[24*u + 24 + 5] += ring_adv_v(sDWr, vLdsW[u:u+1])
        for i in range(24):
            mt, ks = i // 12, i % 12
            if i + 3 < 24: rd(t, i + 3)
            else: rd(t + 1, i + 3 - 24)
            g.wait((kp, 'x', i), lg=('X', t, i))
            x = XF[i % 4]
            for nt in range(6):
                a = (A1 if mt else A0) + 4*nt
                c = '0' if ks == 0 else f'v[{a}:{a+3}]'
                e(f'  v_mfma_f32_16x16x32_bf16 v[{a}:{a+3}], {breg((ks*6+nt)*4)}, v[{x}:{x+3}], {c}')
                run(GP[6*i + nt])
        g.wait((kp, 'end'), lg=('RW', ts, 5) if var == 1 else ('OW', 0, 2))
        if st and DBG:
            lab[0] += 1
            e(f'  s_cmp_lg_u32 s62, 1')
            e(f'  s_cbranch_scc1 L_nd{lab[0]}')
            e('  s_sub_u32 s26, s60, s64')
            e(f'  v_mov_b32 v{TMP[0]}, s26')
            e(f'  v_mov_b32 v{TMP[1]}, s63')
            e(f'  buffer_store_dword v{TMP[0]}, v{TMP[1]}, s[56:59], 0 offen')
            e('  s_add_u32 s63, s63, 4')
            e('  s_memrealtime s[60:61]')
            e(f'L_nd{lab[0]}:')
        e('  s_barrier')

    if DBG:
        e('  s_load_dwordx2 s[24:25], s[0:1], 32')
        e('  s_memrealtime s[60:61]')
        e('  s_waitcnt lgkmcnt(0)')
        e('  s_mov_b32 s56, s24'); e('  s_and_b32 s57, s25, 0xffff'); e('  s_mov_b32 s58, 256'); e('  s_mov_b32 s59, 0x00020000')
        e(f'  s_mov_b32 s63, {4*stamp_n[0]}')
        e(f'  s_cmp_eq_u32 s2, {DBG-1}')
        e('  s_cselect_b32 s62, 1, 0')
        e(f'  s_cmp_eq_u32 s{sW}, {int(opts.get("dbgw", 0))}')
        e('  s_cselect_b32 s62, s62, 0')
    if unroll:
        for t in range(0, NTILE): iteration(t, only)
    else:
        e(f'  s_mov_b32 s{sCnt}, 9')
        if AMP == '99': e('  s_memrealtime s[60:61]')
        NV = 1 if opts.get('novar') else 2
        if NV == 2:
            e(f'  s_cmp_ge_u32 s{sW}, 2')
            e('  s_cbranch_scc1 L_loop1')
        for var in range(NV):
            e(f'L_loop{var}:')
            iteration(0, var)
            e(f'L_mid{var}:')
            iteration(1, var, True)
            if AMP and AMP.isdigit():
                e(f'  s_cmp_lg_u32 s{sCnt}, {AMP}')
                e(f'  s_cbranch_scc1 L_amp{var}')
                e('  s_memrealtime s[60:61]')
                e(f'L_amp{var}:')
            e(f'  s_sub_u32 s{sCnt}, s{sCnt}, 1')
            e(f'  s_cmp_lg_u32 s{sCnt}, 0')
            e(f'  s_cbranch_scc1 L_loop{var}')
            if var == 0 and NV == 2: e('  s_branch L_tail')
        e('L_tail:')
    t = NTILE
    out_read(t, 0); out_read(t, 1)
    e('  s_nop 5')
    for u in range(3):
        run(epi_cvt(1, u)); epi_wr(1, u, 0)
    for u in range(6):
        out_store(t, u, 'T')
        if u + 2 < 6: out_read(t, u + 2)
    e('  s_waitcnt lgkmcnt(0)')
    e('  s_barrier')
    for u in range(3):
        e(f'  ds_read_b128 v[{XF[u]}:{XF[u]+3}], v{vOR[3+u]}')
    for u in range(3):
        e(f'  s_waitcnt lgkmcnt({2-u})')
        e(f'  buffer_store_dwordx4 v[{XF[u]}:{XF[u]+3}], v{vGL[u]}, s[{sO}:{sO+3}], s{sSt1} offen{NT_ST}')
    if DBG:
        e('  s_waitcnt vmcnt(0)')
        e('  s_memrealtime s[54:55]')
        e('  s_memtime s[98:99]')
        e('  s_waitcnt lgkmcnt(0)')
        e('  s_cmp_lg_u32 s62, 1')
        e('  s_cbranch_scc1 L_done')
        e(f'  v_mov_b32 v{TMP[0]}, 0')
        for i in range(stamp_n[0]):
            e(f'  s_sub_u32 s26, s{64+2*i}, s64')
            e(f'  v_mov_b32 v{TMP[1]}, s26')
            e(f'  buffer_store_dword v{TMP[1]}, v{TMP[0]}, s[56:59], 0 offen offset:{4*i}')
        for (sr, off) in (('s60, s64', 52), ('s54, s64', 56), ('s98, s96', 60)):
            e(f'  s_sub_u32 s26, {sr}')
            e(f'  v_mov_b32 v{TMP[1]}, s26')
            e(f'  buffer_store_dword v{TMP[1]}, v{TMP[0]}, s[56:59], 0 offen offset:{off}')
    if AMP:
        e('  s_waitcnt vmcnt(0)')
        e('  s_memrealtime s[54:55]')
        e('  s_memtime s[98:99]')
        e('  s_waitcnt lgkmcnt(0)')
        if AMP == '0': e('  s_mov_b32 s60, s54')
        e('  s_cmp_lg_u32 s2, 100')
        e('  s_cbranch_scc1 L_done')
        e('  s_sub_u32 s27, s60, s64')
        e('  s_mul_i32 s27, s27, 10')
        if AMP == 'c':
            e('  s_sub_u32 s27, s98, s96')
            e('  s_lshr_b32 s27, s27, 1')
        e('L_spin:')
        e('  s_sleep 8')
        e('  s_memrealtime s[56:57]')
        e('  s_waitcnt lgkmcnt(0)')
        e('  s_sub_u32 s26, s56, s54')
        e('  s_cmp_lt_u32 s26, s27')
        e('  s_cbranch_scc1 L_spin')
    e('L_done:')
    e('  s_endpgm')
    e('.section .rodata,"a"')
    e('.p2align 6')
    e('.amdhsa_kernel standalone__depthwise_separable__vision_kernel')
    e('  .amdhsa_next_free_vgpr 512')
    e('  .amdhsa_next_free_sgpr 100')
    e('  .amdhsa_accum_offset 256')
    e('  .amdhsa_group_segment_fixed_size 0')
    e('  .amdhsa_kernarg_size 48')
    e('  .amdhsa_user_sgpr_count 2')
    e('  .amdhsa_user_sgpr_kernarg_segment_ptr 1')
    e('  .amdhsa_system_sgpr_workgroup_id_x 1')
    e('  .amdhsa_float_denorm_mode_32 3')
    e('.end_amdhsa_kernel')

if __name__ == '__main__':
    out = sys.argv[1]
    opts = dict(a.split('=', 1) for a in sys.argv[2:])
    for k in ('nt_ld', 'nt_st'):
        if k in opts: opts[k] = (' ' + opts[k].replace('+', ' ')) if opts[k] != 'none' else ''
    open(out, 'w').write(gen(opts))
```

```python
import sys, re
HDR = open('standalone__depthwise_separable__vision.s.ref').read().split('; Override launch')[0]
NAME = 'standalone__depthwise_separable__vision_kernel'

def regs_of(tok):
    m = re.fullmatch(r'([va])\[(\d+):(\d+)\]', tok)
    if m: return {(m.group(1), i) for i in range(int(m.group(2)), int(m.group(3)) + 1)}
    m = re.fullmatch(r'([va])(\d+)', tok)
    if m: return {(m.group(1), int(m.group(2)))}
    return set()

def hazard_check(L):
    ins = [l.strip() for l in L if l.startswith('  ') and not l.strip().startswith(';') and not l.strip().startswith('.')]
    hist = []; st = 0; valu = []; dots = []; stores = []; m0w = -10; sw = []
    for l in ins:
        op = l.split()[0]
        toks = [t.strip(',') for t in l.split()[1:]]
        allr = set()
        for t in toks: allr |= regs_of(t)
        isv = op.startswith('v_') and not op.startswith('v_mfma')
        if op.startswith('v_mfma'):
            d = regs_of(toks[0]); a = regs_of(toks[1]); b = regs_of(toks[2]); c = regs_of(toks[3])
            for (s0, r) in valu:
                if st - s0 - 1 < 2 and (r & (a | b | c)): raise Exception(f'VALU->MFMA hazard: {l}')
            for (s0, r) in dots:
                if st - s0 - 1 < 3 and (r & (a | b | c | d)): raise Exception(f'DOT->MFMA hazard: {l}')
            for (s0, dd, cc) in hist:
                if st - s0 - 1 < 8 and (dd & (a | b)): raise Exception(f'MFMA D->A/B hazard: {l}')
                if st - s0 - 1 < 6 and (dd & c) and dd != c: raise Exception(f'MFMA D->C overlap hazard: {l}')
            hist.append((st, d, c))
        elif isv or op.startswith('ds_') or op.startswith('buffer_') or op.startswith('global_'):
            for (s0, dd, cc) in hist:
                if st - s0 - 1 < 8 and (dd & allr): raise Exception(f'MFMA D->use hazard dist {st-s0-1}: {l}')
            for (s0, r) in dots:
                if st - s0 - 1 < 3 and (r & allr): raise Exception(f'DOT->use hazard dist {st-s0-1}: {l}')
            if isv:
                w = regs_of(toks[0])
                for (s0, dd, cc) in hist:
                    if st - s0 - 1 < 3 and (cc & w): raise Exception(f'MFMA C WAR hazard: {l}')
                for (s0, r) in stores:
                    if st - s0 - 1 < 2 and (r & w): raise Exception(f'store data WAR hazard: {l}')
                if op.startswith('v_readfirstlane') or op.startswith('v_readlane'):
                    for (s0, r) in valu:
                        if st - s0 - 1 < 1 and (r & allr): raise Exception(f'VALU->readlane hazard: {l}')
                    sw.append((st, toks[0]))
                else:
                    for (s0, sr) in sw:
                        if st - s0 - 1 < 2 and sr in toks[1:]: raise Exception(f'VALU sgpr -> VALU hazard: {l}')
                if op.startswith('v_dot'): dots.append((st, w)); dots = dots[-6:]
                else: valu.append((st, w)); valu = valu[-4:]
            else:
                if op.startswith('buffer_store') or op.startswith('global_store'): stores.append((st, regs_of(toks[0]))); stores = stores[-3:]
                if l.endswith(' lds') and st - m0w - 1 < 1: raise Exception(f'M0->DMA hazard: {l}')
                if not op.startswith('ds_'):
                    for (s0, sr) in sw:
                        if st - s0 - 1 < 5 and sr in toks: raise Exception(f'VALU sgpr -> VMEM hazard: {l}')
        if op.startswith('s_') and toks and toks[0] == 'm0': m0w = st
        hist = [h for h in hist if st - h[0] < 24]
        sw = sw[-4:]
        st += int(toks[0]) + 1 if op == 's_nop' else 1

class G:
    def __init__(self): self.sites = {}; self.reset('collect')
    def reset(self, mode): self.mode = mode; self.L = []; self.vm = []; self.lg = []
    def e(self, s): self.L.append(s)
    def vmop(self, s, tag=None): self.L.append(s); self.vm.append(tag)
    def lgop(self, s, tag=None): self.L.append(s); self.lg.append(tag)
    def _cnt(self, lst, tag):
        for i in range(len(lst) - 1, -1, -1):
            if lst[i] == tag: return len(lst) - 1 - i
        raise KeyError(tag)
    def wait(self, key, vm=None, lg=None):
        if self.mode == 'collect':
            cur = self.sites.get(key, (63, 15))
            v = min(cur[0], self._cnt(self.vm, vm)) if vm is not None else cur[0]
            l = min(cur[1], self._cnt(self.lg, lg)) if lg is not None else cur[1]
            self.sites[key] = (v, l)
        v, l = self.sites[key]
        s = '  s_waitcnt'
        if vm is not None: s += f' vmcnt({v})'
        if lg is not None: s += f' lgkmcnt({l})'
        self.L.append(s)

def gen(opts):
    g = G()
    build(g, opts, True)
    hazard_check(g.L)
    g.reset('emit')
    build(g, opts, False)
    return '\n'.join(g.L) + '\n'

def build(g, opts, unroll):
    e = g.e
    NT_LD = opts.get('nt_ld', ' nt'); NT_ST = opts.get('nt_st', ' sc1')
    ST = int(opts.get('st', 0)); FUSE = int(opts.get('fuse', 1)); CPF = int(opts.get('cpf', 1))
    TILE = 24576; HALF = 12288; NTILE = 18; STRIDE = 256 * TILE; XB = 113246208
    L_O = 0; L_X = 2 * TILE; L_D = L_X + 4 * TILE; L_TOT = L_D + 4096
    vX = [1, 2, 3]; vG = [4, 5, 6]; vR = [7, 8, 9, 10]; vW = [11, 12, 13]; vB = [14, 15]; vD = 16
    VR_, VT_ = 18, 19
    ACC = [20, 44]; CV = [68, 80]; XF = [92, 100, 108]; OB = [116 + 4*i for i in range(6)]
    RAW = [116, 148, 180]; FRM = 68; DWR = [84, 88]; TMP = list(range(212, 224)); BV = 224
    T = list(range(212, 224))
    sX, sO, sP, sD = 4, 8, 12, 16
    sW, sLd, sSt0, sSt1, sM, sCnt, sHi, sLo, sBo, sLd1 = 20, 21, 22, 23, 33, 32, 34, 35, 36, 37
    def breg(ks, nt):
        i = (ks*6 + nt) * 4
        return f'a[{i}:{i+3}]' if i < 256 else f'v[{BV+i-256}:{BV+i-253}]'
    def bdst(ks, nt, q):
        i = (ks*6 + nt) * 4 + q
        return ('a', i) if i < 256 else ('v', BV + i - 256)
    def run(items):
        for it in items:
            if callable(it): it()
            else: e(it)
    def stamp(first=False):
        if not ST: return
        if not first:
            e('  s_mov_b32 m0, s94'); e(f'  v_writelane_b32 v{VR_}, s90, m0'); e(f'  v_writelane_b32 v{VT_}, s92, m0'); e('  s_add_u32 s94, s94, 1')
        e('  s_memrealtime s[90:91]'); e('  s_memtime s[92:93]')
    pst = [0]
    def pstamp():
        if ST < 2: return
        e('  s_waitcnt lgkmcnt(0)'); stamp(); pst[0] += 1

    e(HDR.rstrip('\n'))
    e(f'; @launch grid=(256,1,1) block=(256,1,1) lds={L_TOT}')
    e('.amdgcn_target "amdgcn-amd-amdhsa--gfx950"')
    e('.text')
    e(f'.globl {NAME}')
    e('.p2align 8')
    e(f'.type {NAME},@function')
    e(f'{NAME}:')
    e('  s_cmp_ge_u32 s2, 256')
    e('  s_cbranch_scc1 L_done')
    e('  s_load_dwordx4 s[24:27], s[0:1], 0')
    e('  s_load_dwordx4 s[28:31], s[0:1], 16')
    if ST:
        e('  s_mov_b32 s94, 0'); stamp(True)
    if CPF:
        e('  s_getpc_b64 s[40:41]')
        e('L_pc:')
        e(f'  v_lshlrev_b32 v{T[0]}, 7, v0')
        e(f'  v_min_u32 v{T[0]}, L_done-L_pc, v{T[0]}')
        e(f'  v_mov_b32 v{T[1]}, s41')
        e(f'  v_add_co_u32 v{T[0]}, vcc, s40, v{T[0]}')
        e('  s_nop 1')
        e(f'  v_addc_co_u32 v{T[1]}, vcc, 0, v{T[1]}, vcc')
        g.vmop(f'  global_load_dword v17, v[{T[0]}:{T[1]}], off')
    lane, lo4, hi2 = T[2], T[3], T[4]
    e(f'  v_lshrrev_b32 v{T[5]}, 6, v0')
    e(f'  v_and_b32 v{lane}, 63, v0')
    e(f'  v_readfirstlane_b32 s{sW}, v{T[5]}')
    e(f'  v_and_b32 v{lo4}, 15, v{lane}')
    e(f'  v_lshrrev_b32 v{hi2}, 4, v{lane}')
    e('  s_and_b32 s38, s2, 7')
    e('  s_lshl_b32 s38, s38, 5')
    e('  s_lshr_b32 s39, s2, 3')
    e('  s_add_u32 s38, s38, s39')
    e(f'  s_mul_i32 s{sLd}, s38, {TILE}')
    e(f'  s_mov_b32 s{sSt0}, s{sLd}')
    e('  s_mul_i32 s39, s39, 9216')
    e(f'  s_mul_i32 s38, s{sW}, 2304')
    e('  s_add_u32 s39, s39, s38')
    e(f'  v_lshlrev_b32 v{T[6]}, 4, v{lane}')
    e(f'  v_lshlrev_b32 v{T[7]}, 4, v{lo4}')
    def xaddr(u):
        e(f'  v_add_u32 v{T[8]}, {256*u}, v0' if u else f'  v_mov_b32 v{T[8]}, v0')
        e(f'  v_mul_u32_u24 v{T[9]}, 0xaaab, v{T[8]}')
        e(f'  v_lshrrev_b32 v{T[9]}, 21, v{T[9]}')
        e(f'  v_mul_u32_u24 v{T[10]}, 48, v{T[9]}')
        e(f'  v_sub_u32 v{T[8]}, v{T[8]}, v{T[10]}')
        e(f'  v_xor_b32 v{T[8]}, v{T[8]}, v{T[9]}')
        e(f'  v_mul_u32_u24 v{T[9]}, 0x300, v{T[9]}')
        e(f'  v_lshl_add_u32 v{vX[u]}, v{T[8]}, 4, v{T[9]}')
    for u in range(3): xaddr(u)
    e(f'  v_mul_u32_u24 v{vB[0]}, 6144, v{hi2}')
    e(f'  v_mul_u32_u24 v{T[8]}, 12, v{lo4}')
    e(f'  s_mul_i32 s38, s{sW}, 192')
    e(f'  v_add3_u32 v{vB[0]}, v{vB[0]}, v{T[8]}, s38')
    e(f'  v_add_u32 v{vB[1]}, 3072, v{vB[0]}')
    e(f'  s_lshl_b32 s{sM}, s{sW}, 10')
    e(f'  s_add_u32 s{sLd1}, s{sLd}, {HALF}')
    e('  s_waitcnt lgkmcnt(0)')
    for (sd, lo, nbytes) in ((sP, 28, 294912), (sX, 24, XB), (sD, 26, 768), (sO, 30, XB)):
        e(f'  s_mov_b32 s{sd}, s{lo}')
        e(f'  s_and_b32 s{sd+1}, s{lo+1}, 0xffff')
        e(f'  s_mov_b32 s{sd+2}, {nbytes}')
        e(f'  s_mov_b32 s{sd+3}, 0x00020000')
        if sd == sP and int(opts.get('warm', 1)):
            g.vmop(f'  buffer_load_dwordx4 v[{XF[0]}:{XF[0]+3}], v{T[6]}, s[{sP}:{sP+3}], s39 offen')
            g.vmop(f'  buffer_load_dwordx4 v[{XF[0]+4}:{XF[0]+7}], v{T[6]}, s[{sP}:{sP+3}], s39 offen offset:1024')
            g.vmop(f'  buffer_load_dwordx4 v[{XF[1]}:{XF[1]+3}], v{T[7]}, s[{sP}:{sP+3}], s39 offen offset:2048', 'warm')
    pstamp()
    def dma_m0(t, u, mreg=None):
        if mreg is None: return f'  s_add_u32 m0, s{sM}, {L_X + (t & 3)*TILE + u*4096}'
        return f'  s_add_u32 m0, s{mreg}, {(t & 1)*TILE + u*4096}'
    def dma_ld(t, u):
        g.vmop(f'  buffer_load_dwordx4 v{vX[u % 3]}, s[{sX}:{sX+3}], s{sLd if u < 3 else sLd1} offen{NT_LD} lds', ('L', t, u))
    def ld_adv(): return [f'  s_add_u32 s{sLd}, s{sLd}, {STRIDE}', f'  s_add_u32 s{sLd1}, s{sLd1}, {STRIDE}']
    def xtile(t):
        for u in range(6):
            e(dma_m0(t, u))
            if u == 0: e('  s_nop 0')
            else: pass
            if u: e('  s_nop 0')
            dma_ld(t, u)
        run(ld_adv())
    e(f'  s_add_u32 m0, s{sM}, {L_D}')
    e(f'  s_mov_b32 s{sBo}, 0')
    g.vmop(f'  buffer_load_dwordx4 v{T[6]}, s[{sD}:{sD+3}], 0 offen lds', 'dw')
    XFIRST = int(opts.get('xfirst', 1))
    if XFIRST: xtile(0)
    def bload(ks):
        r = RAW[ks % 3]
        for i in range(8):
            g.vmop(f'  buffer_load_dwordx3 v[{r+4*i}:{r+4*i+2}], v{vB[i // 4]}, s[{sP}:{sP+3}], s{sBo} offen offset:{(i % 4)*768}', ('B', ks, i))
        e(f'  s_add_u32 s{sBo}, s{sBo}, {TILE}')
    bload(0); bload(1)
    for u in range(3): e(f'  v_lshl_add_u32 v{vG[u]}, v0, 4, {4096*u}' if u == 0 else f'  v_add_u32 v{vG[u]}, {4096*u}, v{vG[0]}')
    e(f'  v_mul_u32_u24 v{T[8]}, 0x300, v{lo4}')
    e(f'  v_xor_b32 v{T[9]}, v{hi2}, v{lo4}')
    e(f'  v_lshl_add_u32 v{vR[0]}, v{T[9]}, 4, v{T[8]}')
    e(f'  v_add_u32 v{vR[0]}, {L_X}, v{vR[0]}')
    for s in range(1, 4): e(f'  v_xor_b32 v{vR[s]}, {s*64}, v{vR[0]}')
    e(f'  s_mul_i32 s38, s{sW}, 12')
    e(f'  v_mul_u32_u24 v{T[9]}, 3, v{hi2}')
    e(f'  v_add_u32 v{T[9]}, s38, v{T[9]}')
    for i in range(3):
        e(f'  v_add_u32 v{T[10]}, {i}, v{T[9]}')
        e(f'  v_xor_b32 v{T[10]}, v{T[10]}, v{lo4}')
        e(f'  v_lshl_add_u32 v{vW[i]}, v{T[10]}, 4, v{T[8]}')
    e(f'  v_lshlrev_b32 v{vD}, 4, v{hi2}')
    e(f'  v_add_u32 v{vD}, s{sM}, v{vD}')
    e(f'  v_add_u32 v{vD}, {L_D}, v{vD}')
    e(f'  s_mov_b32 s{sHi}, 0xffff0000')
    e(f'  s_mov_b32 s{sLo}, 0xffff')
    e(f'  s_mov_b32 s{sSt1}, {XB}')
    bload(2)
    g.wait('dw', vm='dw')
    def dwread(ks): g.lgop(f'  ds_read_b128 v[{DWR[ks & 1]}:{DWR[ks & 1]+3}], v{vD} offset:{64*ks}', ('D', ks))
    dwread(0); dwread(1)
    pstamp()

    def acc(mt, nt): a = ACC[mt] + 4*nt; return f'v[{a}:{a+3}]'
    def mfma(mt, nt, ks, x):
        e(f'  v_mfma_f32_16x16x32_bf16 {acc(mt, nt)}, {breg(ks, nt)}, v[{x}:{x+3}], {"0" if ks == 0 else acc(mt, nt)}')
    def xrd(dst, slotoff, mt, ks, tag):
        g.lgop(f'  ds_read_b128 v[{dst}:{dst+3}], v{vR[ks & 3]} offset:{slotoff + mt*HALF + (ks >> 2)*256}', tag)

    def unit_items(ks):
        r = RAW[ks % 3]; D = DWR[ks & 1]
        it = [lambda: g.wait(('d', ks), lg=('D', ks))]
        for q in range(4):
            it += [f'  v_and_b32 v{FRM+4*q}, s{sLo}, v{D+q}', f'  v_lshlrev_b32 v{FRM+4*q+1}, 16, v{D+q}',
                   f'  v_lshrrev_b32 v{FRM+4*q+2}, 16, v{D+q}', f'  v_and_b32 v{FRM+4*q+3}, s{sHi}, v{D+q}']
        if ks + 2 < 12: it.append(lambda: dwread(ks + 2))
        pend = []
        for q in range(4):
            it.append(lambda q=q: g.wait(('b', ks, q), vm=('B', ks, 2*q + 1)))
            for nt in range(6):
                t0, t1 = TMP[2*nt], TMP[2*nt + 1]
                it.append(f'  v_dot2_f32_bf16 v{t0}, v{r + 8*q + nt//2}, v{FRM + 4*q + (nt & 1)}, 0')
                it.append(f'  v_dot2_f32_bf16 v{t1}, v{r + 8*q + 4 + nt//2}, v{FRM + 4*q + 2 + (nt & 1)}, 0')
                kind, idx = bdst(ks, nt, q)
                if kind == 'v': post = [f'  v_cvt_pk_bf16_f32 v{idx}, v{t0}, v{t1}']
                else: post = [f'  v_cvt_pk_bf16_f32 v{t0}, v{t0}, v{t1}', f'  v_accvgpr_write_b32 a{idx}, v{t0}']
                pend.append(post)
                if len(pend) > 2: it += pend.pop(0)
        it.append('  s_nop 0')
        for p in pend: it += p
        return it

    for ks in range(12):
        it = unit_items(ks)
        mf = []
        if FUSE and ks >= 1:
            k0 = ks - 1; xb = XF[k0 % 3]
            mf = [lambda mt=mt, nt=nt: mfma(mt, nt, k0, xb + 4*mt) for mt in range(2) for nt in range(6)]
        if FUSE and ks == 0:
            pass
        if FUSE:
            pre = []
            if ks == 0:
                it.insert(18, lambda: (g.wait('x0', vm=('B', 0, 1)), e('  s_barrier'), xrd(XF[0], 0, 0, 0, ('PX', 0)), xrd(XF[0] + 4, 0, 1, 0, ('PX', 0))))
            else:
                it.insert(18, lambda ks=ks: (xrd(XF[ks % 3], 0, 0, ks, ('PX', ks)), xrd(XF[ks % 3] + 4, 0, 1, ks, ('PX', ks))))
                it.insert(1, lambda ks=ks: g.wait(('px', ks), lg=('PX', ks - 1)))
        n = len(it); k = 0
        step = (n - 20) // 12 if mf else 0
        for i, x in enumerate(it):
            run([x])
            if mf and i >= 18 and (i - 18) % step == 0 and k < 12:
                mf[k](); k += 1
        assert k == len(mf)
        if ks + 3 < 12: bload(ks + 3)
        XA = int(opts.get('xa', 8))
        if ks == XA:
            if not XFIRST: xtile(0)
            xtile(1); xtile(2)
            if FUSE: xtile(3)
        if ks in (0, 3, 7, 11): pstamp()
    T0 = 1 if FUSE else 0

    def cvt_items(mt, cs):
        a = ACC[mt]
        return [f'  v_cvt_pk_bf16_f32 v{CV[cs] + 3*r + q}, v{a + 8*q + r}, v{a + 8*q + 4 + r}' for r in range(4) for q in range(3)]
    def ow(mt, cs, i, par, tag):
        g.lgop(f'  ds_write_b128 v{vW[i]}, v[{CV[cs]+4*i}:{CV[cs]+4*i+3}] offset:{L_O + par*TILE + mt*HALF}', tag)
    def ord_(t, u):
        g.lgop(f'  ds_read_b128 v[{OB[u]}:{OB[u]+3}], v{vX[u % 3]} offset:{L_O + ((t - 1) & 1)*TILE + (u // 3)*HALF}', ('O', t, u))
    def ost(t, u, key):
        g.wait((key, 'o', u), lg=('O', t, u))
        g.vmop(f'  buffer_store_dwordx4 v[{OB[u]}:{OB[u]+3}], v{vG[u % 3]}, s[{sO}:{sO+3}], s{sSt0 if u < 3 else sSt1} offen{NT_ST}')
    def st_adv(): return [f'  s_add_u32 s{sSt1}, s{sSt0}, {HALF}', f'  s_add_u32 s{sSt0}, s{sSt0}, {STRIDE}']
    def prd(t, ps, h):
        mt, kp = ps // 6, ps % 6
        xrd(XF[ps % 3] + 4*h, (t & 1)*TILE, mt, 2*kp + h, ('X', t, ps))

    sMb = 42
    if FUSE:
        g.wait('pxl', lg=('PX', 11))
        e('  s_nop 1')
        for mt in range(2):
            for nt in range(6): mfma(mt, nt, 11, XF[11 % 3] + 4*mt)
        e('  s_nop 1')
        ci = cvt_items(0, 0)
        run(ci)
        for i in range(3): ow(0, 0, i, 0, ('OW', 0))
        g.wait('pre', vm=('L', 1, 5), lg=('OW', 0))
        e('  s_barrier')
    else:
        g.wait('pre', vm=('L', 0, 5))
        e('  s_barrier')
        e(f'  s_mov_b32 s43, s{sSt0}')
        e(f'  s_mov_b32 s{sSt0}, {XB - STRIDE}')
    SCH = schedule(opts)
    def filler(name, t, kp):
        kind = name[0]
        if kind == 'rd': return lambda: prd(t + (name[1] >= 12), name[1] % 12, name[2])
        if kind == 'wx': return lambda: g.wait((kp, 'x', name[1]), lg=('X', t + (name[1] >= 12), name[1] % 12))
        ep = t + name[-1]
        if kind == 'or': return lambda: ord_(ep, name[1])
        if kind == 'os': return lambda: ost(ep, name[1], kp)
        if kind == 'm0': return lambda: e(dma_m0(ep + 3, name[1], sMb))
        if kind == 'dl': return lambda: dma_ld(ep + 3, name[1])
        if kind == 'cv': return lambda: e(cvt_items(name[1], name[1])[name[2]])
        if kind == 'ow': return lambda: ow(name[1], name[1], name[2], ep & 1, ('OW', ep))
        if kind == 'la': return lambda: e(ld_adv()[name[1]])
        if kind == 'sa': return lambda: e(st_adv()[name[1]])
        if kind == 'mb':
            return lambda: (e(f'  s_xor_b32 s{sMb}, s{sMb}, 0x14000') if (ep + 3) % 2 == 0 else None)
        if kind == 'xr':
            return lambda: (e(f'  v_xor_b32 v{vR[name[1]]}, 0x14000, v{vR[name[1]]}') if (t + 1) % 2 == 0 else None)
        if kind == 'bar':
            def f():
                g.wait((kp, 'bar'), vm=('L', t + 1, 5), lg=g.lg[-1] if g.mode == 'collect' else 0)
                e('  s_barrier')
            return f
        raise KeyError(name)
    pb = lambda t: L_X + ((t & 3) >> 1) * 2 * TILE
    first_base = pb(T0 + 3) ^ (0x14000 if (T0 + 3) % 2 == 0 else 0)
    e(f'  s_add_u32 s{sMb}, s{sM}, {first_base}')
    if not FUSE:
        e(f'  s_mov_b32 s{sSt0}, {XB}')
    for gp in range(120, 144):
        for name in SCH[gp]:
            if name[0] in ('xr', 'bar') or (name[0] == 'wx' and name[1] < 12): continue
            filler(name, T0 - 1, 'pre')()
            if name[0] == 'm0': e('  s_nop 0')
    stamp()

    def iteration(t):
        kp = t & 1
        for ps in range(12):
            mt, kq = ps // 6, ps % 6
            for nt in range(6):
                for h in range(2):
                    mfma(mt, nt, 2*kq + h, XF[ps % 3] + 4*h)
                    gp = 12*ps + 2*nt + h
                    for name in SCH[gp]:
                        if not FUSE and name[0] == 'sa' and name[1] == 1:
                            e(f'  s_mov_b32 s{sSt0}, s43'); e(f'  s_add_u32 s43, s43, {STRIDE}')
                        else: filler(name, t, kp)()
        stamp()

    if unroll:
        for t in range(T0, NTILE): iteration(t)
    else:
        e(f'  s_mov_b32 s{sCnt}, 9')
        if FUSE: e('  s_branch L_mid0')
        e('.p2align 6')
        e('L_loop0:')
        iteration(0)
        e('L_mid0:')
        iteration(1)
        e(f'  s_sub_u32 s{sCnt}, s{sCnt}, 1')
        e(f'  s_cmp_lg_u32 s{sCnt}, 0')
        e('  s_cbranch_scc1 L_loop0')
        e('L_tail:')
    t = NTILE
    done_or = [n[1] for gp in range(120, 144) for n in SCH[gp] if n[0] == 'or']
    done_os = [n[1] for gp in range(120, 144) for n in SCH[gp] if n[0] == 'os']
    for u in range(6):
        if u not in done_or: ord_(t, u)
    e('  s_nop 7')
    ci = cvt_items(1, 1)
    for i in range(3):
        run(ci[4*i:4*i+4]); ow(1, 1, i, t & 1, ('OW', t))
    for u in range(6):
        if u not in done_os: ost(t, u, 'T')
    e(st_adv()[0])
    e('  s_waitcnt lgkmcnt(0)')
    e('  s_barrier')
    for u in range(3):
        e(f'  ds_read_b128 v[{XF[0]+4*u}:{XF[0]+4*u+3}], v{vX[u]} offset:{L_O + (t & 1)*TILE + HALF}')
    for u in range(3):
        e(f'  s_waitcnt lgkmcnt({2-u})')
        e(f'  buffer_store_dwordx4 v[{XF[0]+4*u}:{XF[0]+4*u+3}], v{vG[u]}, s[{sO}:{sO+3}], s{sSt1} offen{NT_ST}')
    if ST:
        e('  s_waitcnt lgkmcnt(0)'); stamp(); e('  s_waitcnt vmcnt(0) lgkmcnt(0)'); stamp(); e('  s_waitcnt lgkmcnt(0)'); stamp()
        for s in ('s_load_dwordx2 s[86:87], s[0:1], 40', 's_waitcnt lgkmcnt(0)', 's_getreg_b32 s92, hwreg(HW_REG_XCC_ID)',
                  f'v_writelane_b32 v{VR_}, s92, 62',
                  's_mov_b32 s88, s86', 's_and_b32 s89, s87, 0xffff', 's_mov_b32 s90, 1048576', 's_mov_b32 s91, 0x00020000',
                  's_lshl_b32 s92, s2, 11', f's_lshl_b32 s93, s{sW}, 9', 's_add_u32 s92, s92, s93',
                  'v_mbcnt_lo_u32_b32 v1, -1, 0', 'v_mbcnt_hi_u32_b32 v1, -1, v1', 'v_lshlrev_b32 v1, 2, v1',
                  f'buffer_store_dword v{VR_}, v1, s[88:91], s92 offen', f'buffer_store_dword v{VT_}, v1, s[88:91], s92 offen offset:256', 's_waitcnt vmcnt(0)'):
            e('  ' + s)
    e('L_done:')
    e('  s_endpgm')
    e('.section .rodata,"a"')
    e('.p2align 6')
    e(f'.amdhsa_kernel {NAME}')
    e('  .amdhsa_next_free_vgpr 512')
    e('  .amdhsa_next_free_sgpr 100')
    e('  .amdhsa_accum_offset 256')
    e('  .amdhsa_group_segment_fixed_size 0')
    e('  .amdhsa_kernarg_size 48')
    e('  .amdhsa_user_sgpr_count 2')
    e('  .amdhsa_user_sgpr_kernarg_segment_ptr 1')
    e('  .amdhsa_system_sgpr_workgroup_id_x 1')
    e('  .amdhsa_float_denorm_mode_32 3')
    e('.end_amdhsa_kernel')

def schedule(opts):
    S = [[] for _ in range(144)]
    def put(ps, gp, *names): S[12*ps + gp] += list(names)
    for ps in range(12):
        put(ps, 0, ('rd', ps + 2, 0)); put(ps, 1, ('rd', ps + 2, 1))
        put(ps, 11, ('wx', ps + 1))
    S[12*9 + 11] = [('bar', 0)]
    put(9, 3, ('xr', 0)); put(9, 4, ('xr', 1)); put(9, 5, ('xr', 2)); put(9, 6, ('xr', 3))
    order = [10, 11, 0, 1, 2, 3, 4, 5, 6, 7, 8, 9]
    ep = lambda ps: 1 if ps >= 10 else 0
    put(10, 2, ('mb', 1))
    for i, u in enumerate(range(3)): put(10, 3 + i, ('or', u, 1))
    for i, u in enumerate(range(3, 6)): put(11, 3 + i, ('or', u, 1))
    for u in range(6):
        ps = order[2*u]; put(ps, 7, ('m0', u, ep(ps))); put(ps, 8, ('dl', u, ep(ps)))
        ps = order[2*u + 1]; put(ps, 8, ('os', u, ep(ps)))
    put(8, 10, ('la', 0, 0)); put(9, 2, ('la', 1, 0))
    put(9, 9, ('sa', 0, 0)); put(9, 10, ('sa', 1, 0))
    for i in range(3):
        ps = 1 + i
        for k in range(4): put(ps, 2 + k, ('cv', 1, 4*i + k, 0))
        put(ps, 6 if ps % 2 else 9, ('ow', 1, i, 0))
    put(6, 9, ('cv', 0, 0, 0)); put(6, 10, ('cv', 0, 1, 0))
    put(7, 2, ('cv', 0, 2, 0)); put(7, 3, ('cv', 0, 3, 0)); put(7, 4, ('ow', 0, 0, 0))
    put(7, 6, ('cv', 0, 4, 0)); put(7, 7, ('cv', 0, 5, 0)); put(7, 9, ('cv', 0, 6, 0)); put(7, 10, ('cv', 0, 7, 0))
    put(8, 2, ('ow', 0, 1, 0))
    put(8, 3, ('cv', 0, 8, 0)); put(8, 4, ('cv', 0, 9, 0)); put(8, 5, ('cv', 0, 10, 0)); put(8, 6, ('cv', 0, 11, 0))
    put(8, 9, ('ow', 0, 2, 0))
    return S

if __name__ == '__main__':
    out = sys.argv[1]
    opts = dict(a.split('=', 1) for a in sys.argv[2:])
    for k in ('nt_ld', 'nt_st'):
        if k in opts: opts[k] = (' ' + opts[k].replace('+', ' ')) if opts[k] != 'none' else ''
    open(out, 'w').write(gen(opts))
```

```python
import sys, re
from gen20 import regs_of, hazard_check, HDR, NAME

class G:
    def __init__(self): self.sites = {}; self.need = set(); self.reset('collect')
    def reset(self, mode): self.mode = mode; self.L = []; self.vm = []; self.lg = []; self.vd = 0; self.ld = 0
    def e(self, s): self.L.append(s)
    def vmop(self, s, tag=None): self.L.append(s); self.vm.append(tag)
    def lgop(self, s, tag=None): self.L.append(s); self.lg.append(tag)
    def _idx(self, lst, tag):
        for i in range(len(lst) - 1, -1, -1):
            if lst[i] == tag: return i
        raise KeyError(tag)
    def wait(self, key, vm=None, lg=None, pad=False):
        if self.mode == 'collect':
            cur = self.sites.get(key, (63, 15)); v, l = cur
            if vm is not None:
                i = self._idx(self.vm, vm); v = min(v, len(self.vm) - 1 - i)
                if i >= self.vd: self.need.add((key, 'v')); self.vd = i + 1
            if lg is not None:
                i = self._idx(self.lg, lg); l = min(l, len(self.lg) - 1 - i)
                if i >= self.ld: self.need.add((key, 'l')); self.ld = i + 1
            self.sites[key] = (v, l)
        v, l = self.sites[key]
        s = ''
        if vm is not None and (key, 'v') in self.need: s += f' vmcnt({v})'
        if lg is not None and (key, 'l') in self.need: s += f' lgkmcnt({l})'
        if s: self.L.append('  s_waitcnt' + s)

def gen(opts):
    g = G()
    build(g, opts, True)
    g.reset('check')
    build(g, opts, True)
    hazard_check(g.L)
    g.reset('emit')
    build(g, opts, False)
    return '\n'.join(g.L) + '\n'

def build(g, opts, unroll):
    e = g.e
    NT_LD = opts.get('nt_ld', ' nt'); NT_ST = opts.get('nt_st', ' sc1')
    ST = int(opts.get('st', 0)); CPF = int(opts.get('cpf', 1)); ASYM = int(opts.get('asym', 0))
    TILE = 24576; HALF = 12288; STRIDE = 256 * TILE; XB = 113246208
    NTILE = 19 if ASYM else 18
    L_O = 0; L_X = 2 * TILE; L_D = L_X + 4 * TILE; L_TOT = L_D + 4096
    vX = [1, 2, 3]; vG = [4, 5, 6]; vR = [7, 8, 9, 10]; vW = [11, 12, 13]; vBL = [14, 15, 16]; vTr = 17; vD = 18; vM = [19, 20]
    VR_, VT_ = 21, 22
    ACC = [24, 48]; DT = [72, 80, 88]; DG = [96, 102]; BV = 112; NVU = 6
    T = list(range(72, 96))
    RAWF = [144, 168]; XF = [192, 200, 208]; OB = [216 + 4*i for i in range(6)]
    sX, sO, sP, sD = 4, 8, 12, 16
    sW, sLd, sSt0, sSt1, sCnt, sM, sBs, sBo, sLd1, sMb, sDl = 20, 21, 22, 23, 32, 33, 34, 36, 37, 42, 43
    sStr, sAlt = 44, 45
    VFIRST = int(opts.get('vfirst', 0))
    def bloc(ks):
        if VFIRST: return ('v', BV + 24*ks) if ks < NVU else ('a', 24*(ks - NVU))
        return ('a', 24*ks) if ks < 12 - NVU else ('v', BV + 24*(ks - (12 - NVU)))
    def breg(ks, nt):
        f, b = bloc(ks); return f'{f}[{b+4*nt}:{b+4*nt+3}]'
    def run(items):
        for it in items:
            if callable(it): it()
            else: e(it)
    def stamp(first=False):
        if not ST: return
        if not first:
            e('  s_mov_b32 m0, s94'); e(f'  v_writelane_b32 v{VR_}, s90, m0'); e(f'  v_writelane_b32 v{VT_}, s92, m0'); e('  s_add_u32 s94, s94, 1')
        e('  s_memrealtime s[90:91]'); e('  s_memtime s[92:93]')
    def pstamp():
        if ST < 2: return
        e('  s_waitcnt lgkmcnt(0)'); stamp()
    sig = lambda t: t + 1

    e(HDR.rstrip('\n'))
    e(f'; @launch grid=(256,1,1) block=(256,1,1) lds={L_TOT}')
    e('.amdgcn_target "amdgcn-amd-amdhsa--gfx950"')
    e('.text')
    e(f'.globl {NAME}')
    e('.p2align 8')
    e(f'.type {NAME},@function')
    e(f'{NAME}:')
    e('  s_cmp_ge_u32 s2, 256')
    e('  s_cbranch_scc1 L_done')
    e('  s_load_dwordx4 s[24:27], s[0:1], 0')
    e('  s_load_dwordx4 s[28:31], s[0:1], 16')
    if ST:
        e('  s_mov_b32 s94, 0'); stamp(True)
    if CPF:
        e('  s_getpc_b64 s[40:41]')
        e('L_pc:')
        e(f'  v_lshlrev_b32 v{T[0]}, 7, v0')
        e(f'  v_min_u32 v{T[0]}, L_done-L_pc, v{T[0]}')
        e(f'  v_mov_b32 v{T[1]}, s41')
        e(f'  v_add_co_u32 v{T[0]}, vcc, s40, v{T[0]}')
        e(f'  v_lshrrev_b32 v{T[5]}, 6, v0')
        e(f'  v_and_b32 v{T[2]}, 63, v0')
        e(f'  v_addc_co_u32 v{T[1]}, vcc, 0, v{T[1]}, vcc')
        g.vmop(f'  global_load_dword v23, v[{T[0]}:{T[1]}], off')
    else:
        e(f'  v_lshrrev_b32 v{T[5]}, 6, v0')
        e(f'  v_and_b32 v{T[2]}, 63, v0')
    lane, lo4, hi2 = T[2], T[3], T[4]
    e(f'  v_readfirstlane_b32 s{sW}, v{T[5]}')
    e(f'  v_and_b32 v{lo4}, 15, v{lane}')
    e(f'  v_lshrrev_b32 v{hi2}, 4, v{lane}')
    e('  s_and_b32 s38, s2, 7')
    e('  s_lshl_b32 s38, s38, 5')
    e('  s_lshr_b32 s39, s2, 3')
    e('  s_add_u32 s38, s38, s39')
    e(f'  s_mul_i32 s{sLd}, s38, {TILE}')
    e('  s_mul_i32 s39, s39, 9216')
    e(f'  s_mul_i32 s38, s{sW}, 2304')
    e('  s_add_u32 s39, s39, s38')
    e(f'  v_lshlrev_b32 v{T[6]}, 4, v{lane}')
    e(f'  v_lshlrev_b32 v{T[7]}, 4, v{lo4}')
    def xaddr(u):
        src = 0
        if u: e(f'  v_add_u32 v{T[8]}, {256*u}, v0'); src = T[8]
        e(f'  v_mul_u32_u24 v{T[9]}, 0xaaab, v{src}')
        e(f'  v_lshrrev_b32 v{T[9]}, 21, v{T[9]}')
        e(f'  v_mul_u32_u24 v{T[10]}, 48, v{T[9]}')
        e(f'  v_sub_u32 v{T[8]}, v{src}, v{T[10]}')
        e(f'  v_xor_b32 v{T[8]}, v{T[8]}, v{T[9]}')
        e(f'  v_mul_u32_u24 v{T[9]}, 0x300, v{T[9]}')
        e(f'  v_lshl_add_u32 v{vX[u]}, v{T[8]}, 4, v{T[9]}')
    for u in range(3): xaddr(u)
    e(f'  s_lshl_b32 s{sM}, s{sW}, 10')
    e(f'  s_add_u32 s{sLd1}, s{sLd}, {HALF}')
    e(f'  s_mov_b32 s{sSt0}, s{sLd}')
    e('  s_waitcnt lgkmcnt(0)')
    def srd(sd, lo, nbytes):
        e(f'  s_mov_b32 s{sd}, s{lo}')
        e(f'  s_and_b32 s{sd+1}, s{lo+1}, 0xffff')
        e(f'  s_mov_b32 s{sd+2}, {nbytes}')
        e(f'  s_mov_b32 s{sd+3}, 0x00020000')
    srd(sP, 28, 294912)
    if int(opts.get('warm', 1)):
        g.vmop(f'  buffer_load_dwordx4 a[{OB[0]}:{OB[0]+3}], v{T[6]}, s[{sP}:{sP+3}], s39 offen')
        g.vmop(f'  buffer_load_dwordx4 a[{OB[1]}:{OB[1]+3}], v{T[6]}, s[{sP}:{sP+3}], s39 offen offset:1024')
        g.vmop(f'  buffer_load_dwordx4 a[{OB[2]}:{OB[2]+3}], v{T[7]}, s[{sP}:{sP+3}], s39 offen offset:2048')
    srd(sD, 26, 768)
    e(f'  s_add_u32 m0, s{sM}, {L_D}')
    srd(sX, 24, XB)
    g.vmop(f'  buffer_load_dwordx4 v{T[6]}, s[{sD}:{sD+3}], 0 offen lds', 'dw')
    pstamp()
    def dma_m0(t, u, mreg=None):
        if mreg is None: return f'  s_add_u32 m0, s{sM}, {L_X + (sig(t) & 3)*TILE + u*4096}'
        return f'  s_add_u32 m0, s{mreg}, {(sig(t) & 1)*TILE + u*4096}'
    def dma_ld(t, u):
        g.vmop(f'  buffer_load_dwordx4 v{vX[u % 3]}, s[{sX}:{sX+3}], s{sLd if u < 3 else sLd1} offen{NT_LD} lds', ('L', t, u))
    def xitems(t):
        it = []
        for u in range(6):
            it.append([dma_m0(t, u), '  s_nop 0', lambda u=u: dma_ld(t, u)])
        it[2].append(f'  s_add_u32 s{sLd}, s{sLd}, {STRIDE}')
        it[5].append(f'  s_add_u32 s{sLd1}, s{sLd1}, {STRIDE}')
        return it
    XPOS = [int(z) for z in opts.get('xpos', '-1,-1,9').split(',')]
    badr = []
    for i in range(3):
        badr += [f'  v_add_u32 v{T[8]}, {64*i}, v{lane}', f'  v_mul_u32_u24 v{T[9]}, 0xaaab, v{T[8]}', f'  v_lshrrev_b32 v{T[9]}, 19, v{T[9]}',
                 f'  v_mul_u32_u24 v{T[10]}, 12, v{T[9]}', f'  v_sub_u32 v{T[10]}, v{T[8]}, v{T[10]}', f'  v_mul_u32_u24 v{T[9]}, 0x300, v{T[9]}',
                 f'  v_lshl_add_u32 v{T[9]}, v{T[10]}, 4, v{T[9]}', f'  v_add_u32 v{vBL[i]}, s38, v{T[9]}']
        if i: badr.append(f'  v_subrev_u32 v{vBL[i]}, {1024*i}, v{vBL[i]}')
    e(f'  s_mul_i32 s38, s{sW}, 192')
    for t in range(3):
        if XPOS[t] == -1:
            for grp in xitems(t):
                e(grp[0])
                if badr: run(badr[:5]); badr = badr[5:]
                else: e('  s_nop 0')
                run(grp[2:])
    run(badr)
    e(f'  s_mul_i32 s{sBs}, s{sW}, 6144')
    e(f'  s_mov_b32 s{sBo}, 0')
    def bitems(ks):
        it = []
        for h in range(2):
            it.append(f'  s_add_u32 m0, s{sBs}, {(ks % 3)*TILE + h*3072}')
            if ks or h: it.append(f'  s_add_u32 s{sBo}, s{sBo}, {HALF}')
            else: it.append('  s_nop 0')
            for i in range(3):
                it.append(lambda i=i, h=h: g.vmop(f'  buffer_load_dwordx4 v{vBL[i]}, s[{sP}:{sP+3}], s{sBo} offen offset:{i*1024} lds', ('B', ks, 3*h + i)))
        return it
    run(bitems(0))
    srd(sO, 30, XB)
    e(f'  v_lshlrev_b32 v{vG[0]}, 4, v0')
    for u in range(1, 3): e(f'  v_add_u32 v{vG[u]}, {4096*u}, v{vG[0]}')
    e(f'  v_mul_u32_u24 v{T[8]}, 0x300, v{lo4}')
    e(f'  v_xor_b32 v{T[9]}, v{hi2}, v{lo4}')
    e(f'  v_lshl_add_u32 v{vR[0]}, v{T[9]}, 4, v{T[8]}')
    e(f'  v_add_u32 v{vR[0]}, {L_X}, v{vR[0]}')
    for s in range(1, 4): e(f'  v_xor_b32 v{vR[s]}, {s*64}, v{vR[0]}')
    e(f'  s_mul_i32 s38, s{sW}, 12')
    e(f'  v_mul_u32_u24 v{T[9]}, 3, v{hi2}')
    e(f'  v_add_u32 v{T[9]}, s38, v{T[9]}')
    for i in range(3):
        e(f'  v_add_u32 v{T[10]}, {i}, v{T[9]}')
        e(f'  v_xor_b32 v{T[10]}, v{T[10]}, v{lo4}')
        e(f'  v_lshl_add_u32 v{vW[i]}, v{T[10]}, 4, v{T[8]}')
    e(f'  v_lshlrev_b32 v{vD}, 4, v{hi2}')
    e(f'  v_add_u32 v{vD}, s{sM}, v{vD}')
    e(f'  v_add_u32 v{vD}, {L_D}, v{vD}')
    e(f'  v_bfe_u32 v{T[9]}, v{lane}, 2, 2')
    e(f'  v_and_b32 v{T[10]}, 3, v{lane}')
    e(f'  v_lshl_add_u32 v{T[11]}, v{hi2}, 3, v{T[9]}')
    e(f'  v_mul_u32_u24 v{T[11]}, 192, v{T[11]}')
    e(f'  v_mul_u32_u24 v{T[12]}, 48, v{T[10]}')
    e(f'  v_add3_u32 v{vTr}, v{T[11]}, v{T[12]}, s{sBs}')
    e(f'  v_lshlrev_b32 v{T[11]}, 4, v{T[10]}')
    e(f'  v_mov_b32 v{T[12]}, 0xffff')
    e(f'  v_lshlrev_b32 v{T[12]}, v{T[11]}, v{T[12]}')
    e(f'  v_cmp_eq_u32 vcc, v{hi2}, v{T[9]}')
    e(f'  v_mov_b32 v{DG[0]+2}, 0')
    e(f'  v_mov_b32 v{DG[0]+3}, 0')
    e(f'  v_cndmask_b32 v{T[12]}, 0, v{T[12]}, vcc')
    e(f'  v_cmp_lt_u32 vcc, 1, v{T[10]}')
    e(f'  v_mov_b32 v{DG[1]+2}, 0')
    e(f'  v_mov_b32 v{DG[1]+3}, 0')
    e(f'  v_cndmask_b32 v{vM[1]}, 0, v{T[12]}, vcc')
    e(f'  v_sub_u32 v{vM[0]}, v{T[12]}, v{vM[1]}')
    e(f'  s_mov_b32 s{sSt1}, {XB}')
    e(f'  s_mov_b32 s{sStr}, {STRIDE}')
    e(f'  s_mov_b32 s{sAlt}, {32*TILE}')
    if ASYM:
        e('  s_and_b32 s38, s2, 1')
        e('  s_lshl_b32 s38, s38, 1')
        e(f'  s_sub_u32 s{sCnt}, 18, s38')
    else:
        e(f'  s_mov_b32 s{sCnt}, 17')
    run(bitems(1))
    pstamp()

    def acc(mt, nt): a = ACC[mt] + 4*nt; return f'v[{a}:{a+3}]'
    def mfma(mt, nt, ks, x):
        e(f'  v_mfma_f32_16x16x32_bf16 {acc(mt, nt)}, {breg(ks, nt)}, a[{x}:{x+3}], {"0" if ks == 0 else acc(mt, nt)}')
    def xrd(dst, slotoff, mt, ks, tag):
        g.lgop(f'  ds_read_b128 a[{dst}:{dst+3}], v{vR[ks & 3]} offset:{slotoff + mt*HALF + (ks >> 2)*256}', tag)
    def titems(ks):
        R = RAWF[ks & 1]; D = DG[ks & 1]
        it = [lambda: g.wait(('b', ks), vm=('B', ks, 5))]
        it.append(lambda: g.lgop(f'  ds_read_b64 v[{D}:{D+1}], v{vD} offset:{64*ks}', ('DW', ks)))
        it.append(lambda: g.lgop(f'  ds_read_b64 v[{D+4}:{D+5}], v{vD} offset:{64*ks + 8}', ('DW', ks)))
        for nt in range(6):
            for hh in range(2):
                it.append(lambda nt=nt, hh=hh: g.lgop(f'  ds_read_b64_tr_b16 a[{R+4*nt+2*hh}:{R+4*nt+2*hh+1}], v{vTr} offset:{(ks % 3)*TILE + hh*768 + nt*8}', ('TR', ks)))
        return it
    def mitems(ks):
        D = DG[ks & 1]
        return [lambda: g.wait(('dw', ks), lg=('DW', ks)),
                f'  v_and_b32 v{D}, v{vM[0]}, v{D}', f'  v_and_b32 v{D+1}, v{vM[1]}, v{D+1}',
                f'  v_and_b32 v{D+4}, v{vM[0]}, v{D+4}', f'  v_and_b32 v{D+5}, v{vM[1]}, v{D+5}']
    def smf(ks, nt, h):
        R = RAWF[ks & 1] + 4*nt; D = DG[ks & 1] + 2*h; o = DT[nt % 3] + 4*h
        e(f'  v_mfma_f32_16x16x32_bf16 v[{o}:{o+3}], v[{D}:{D+3}], a[{R}:{R+3}], 0')
    def post(ks, nt):
        f, b = bloc(ks); o = DT[nt % 3]
        if f == 'v': return [f'  v_cvt_pk_bf16_f32 v{b+4*nt+q}, v{o+2*q}, v{o+2*q+1}' for q in range(4)]
        return ([f'  v_cvt_pk_bf16_f32 v{o+2*q}, v{o+2*q}, v{o+2*q+1}' for q in range(4)] +
                [f'  v_accvgpr_write_b32 a{b+4*nt+q}, v{o+2*q}' for q in range(4)])
    X0 = (sig(0) & 1) * TILE
    run(titems(0))
    run(bitems(2))
    e('  s_barrier')
    assert XPOS[0] == -1
    run(mitems(0))
    for r in range(13):
        ngap = (12 if r < 12 else 0) + (12 if r >= 1 else 0)
        Q = []
        if r < 12: Q += [lambda r=r: xrd(XF[r % 3], X0, 0, r, ('PX', r)), lambda r=r: xrd(XF[r % 3] + 4, X0, 1, r, ('PX', r))]
        if r + 1 < 12: Q += titems(r + 1)
        if r + 1 < 12: Q += mitems(r + 1)
        V = []
        if r + 3 < 12:
            b = bitems(r + 3)
            V += [b[0:3], b[3:4], b[4:5], b[5:8], b[8:9], b[9:10]]
        for t in range(3):
            if XPOS[t] == r: V += xitems(t)
        GQ = [[] for _ in range(ngap)]
        for i, x in enumerate(Q): GQ[(i*ngap)//len(Q)].append(x)
        VO = int(opts.get('vo', 1))
        for i, x in enumerate(V): GQ[min(ngap - 1, (i*ngap)//len(V) + VO)] += x
        if r < 12: g.wait(('tr', r), lg=('TR', r))
        if r >= 1: g.wait(('px', r), lg=('PX', r - 1))
        e('  s_nop 0')
        gi = 0
        for nt in range(6):
            P = post(r, nt - 2) if (nt >= 2 and r < 12) else (post(r - 1, nt + 4) if (nt < 2 and r >= 1) else [])
            M = []
            if r < 12: M += [lambda nt=nt: smf(r, nt, 0), lambda nt=nt: smf(r, nt, 1)]
            if r >= 1: M += [lambda nt=nt: mfma(0, nt, r - 1, XF[(r - 1) % 3]), lambda nt=nt: mfma(1, nt, r - 1, XF[(r - 1) % 3] + 4)]
            if r == 0 and P: e('  s_nop 3')
            for k, m in enumerate(M):
                m()
                run(P[(k*len(P))//len(M):((k+1)*len(P))//len(M)])
                run(GQ[gi]); gi += 1
        if r in (0, 3, 7, 11): pstamp()

    def cvt_i(mt, d): a = ACC[mt]; return f'  v_cvt_pk_bf16_f32 v{a+d}, v{a+2*d}, v{a+2*d+1}'
    def ow(mt, i, par, tag):
        a = ACC[mt] + 4*i
        g.lgop(f'  ds_write_b128 v{vW[i]}, v[{a}:{a+3}] offset:{L_O + par*TILE + mt*HALF}', tag)
    def ord_(t, u):
        g.lgop(f'  ds_read_b128 a[{OB[u]}:{OB[u]+3}], v{vX[u % 3]} offset:{L_O + ((t - 1) & 1)*TILE + (u // 3)*HALF}', ('O', t, u))
    MIX = opts.get('mix', '')
    def stfl(u): return ' nt' if str(u) in MIX else NT_ST
    def ost(t, u, key):
        g.wait((key, 'o', u), lg=('O', t, u))
        g.vmop(f'  buffer_store_dwordx4 a[{OB[u]}:{OB[u]+3}], v{vG[u % 3]}, s[{sO}:{sO+3}], s{sSt0 if u < 3 else sSt1} offen{stfl(u)}')
    def prd(t, ps, h):
        mt, kp = ps // 6, ps % 6
        xrd(XF[ps % 3] + 4*h, (sig(t) & 1)*TILE, mt, 2*kp + h, ('X', t, ps))

    e('  s_barrier')
    for r in vR: e(f'  v_xor_b32 v{r}, 0x14000, v{r}')
    e('  s_nop 1')
    for i in range(3):
        for k in range(4): e(cvt_i(0, 4*i + k))
        ow(0, i, 0, ('OW', 0))
    for grp in xitems(3): run(grp)
    g.wait('pre', vm=('L', 1, 5), lg=('OW', 0))
    e('  s_barrier')
    SCH = schedule(opts)
    lab = [0]; OOL = []
    def filler(name, t, kp):
        kind = name[0]
        if kind == 'rd': return lambda: prd(t + (name[1] >= 12), name[1] % 12, name[2])
        if kind == 'wx': return lambda: g.wait((kp, 'x', name[1]), lg=('X', t + (name[1] >= 12), name[1] % 12))
        ep = t + name[-1]
        if kind == 'or': return lambda: ord_(ep, name[1])
        if kind == 'os': return lambda: ost(ep, name[1], kp)
        if kind == 'm0': return lambda: e(dma_m0(ep + 3, name[1], sMb))
        if kind == 'dl':
            def f():
                lab[0] += 1
                if not unroll: e(f'  s_cbranch_vccz L_sk{lab[0]}')
                else: e('  s_nop 0')
                dma_ld(ep + 3, name[1])
                if not unroll: e(f'L_sk{lab[0]}:')
            return f
        if kind == 'cv': return lambda: e(cvt_i(name[1], name[2]))
        if kind == 'ow': return lambda: ow(name[1], name[2], ep & 1, ('OW', ep))
        if kind == 'la':
            if not ASYM: return lambda: e(f'  s_add_u32 s{[sLd, sLd1][name[1]]}, s{[sLd, sLd1][name[1]]}, s{sStr}')
            if name[1] == 0: return lambda: run([f'  s_cmp_eq_u32 s{sCnt}, 5', f'  s_cselect_b32 s{sDl}, s{sAlt}, s{sStr}', f'  s_add_u32 s{sLd}, s{sLd}, s{sDl}'])
            return lambda: e(f'  s_add_u32 s{sLd1}, s{sLd1}, s{sDl}')
        if kind == 'sa':
            if name[1] == 0: return lambda: e(f'  s_add_u32 s{sSt1}, s{sSt0}, {HALF}')
            if not ASYM: return lambda: e(f'  s_add_u32 s{sSt0}, s{sSt0}, s{sStr}')
            return lambda: run([f'  s_cmp_eq_u32 s{sCnt}, s46', f'  s_cselect_b32 s{sDl}, s{sAlt}, s{sStr}', f'  s_add_u32 s{sSt0}, s{sSt0}, s{sDl}'])
        if kind == 'mb':
            def f():
                if sig(ep + 3) % 2 == 0: e(f'  s_xor_b32 s{sMb}, s{sMb}, 0x14000')
            return f
        if kind == 'vc':
            return lambda: run([f'  s_cmp_ge_u32 s{sCnt}, 5', '  s_cselect_b64 vcc, -1, 0'])
        if kind == 'xr':
            return lambda: (e(f'  v_xor_b32 v{vR[name[1]]}, 0x14000, v{vR[name[1]]}') if sig(t + 1) % 2 == 0 else None)
        if kind == 'bar':
            def f():
                lab[0] += 1
                g.wait((kp, 'bar'), vm=('L', t + 1, 5), lg=g.lg[-1] if g.mode == 'collect' else 0)
                if not unroll:
                    e(f'  s_cbranch_vccz L_ow{lab[0]}')
                    e(f'L_ob{lab[0]}:')
                    OOL.append(lab[0])
                e('  s_barrier')
            return f
        raise KeyError(name)
    pb = lambda t: L_X + ((sig(t) & 3) >> 1) * 2 * TILE
    first_base = pb(4) ^ (0x14000 if sig(4) % 2 == 0 else 0)
    e(f'  s_add_u32 s{sMb}, s{sM}, {first_base}')
    e('  s_mov_b64 vcc, -1')
    if ASYM:
        e('  s_bitcmp1_b32 s2, 0')
        e('  s_cselect_b32 s46, 0, 1')
        e(f'  s_cselect_b32 s{sAlt}, s{sStr}, s{sAlt}')
    for gp in range(120, 144):
        for name in SCH[gp]:
            if name[0] in ('xr', 'bar', 'vc') or (name[0] == 'wx' and name[1] < 12): continue
            filler(name, 0, 'pre')()
    stamp()

    def iteration(t):
        kp = t & 1
        for ps in range(12):
            mt, kq = ps // 6, ps % 6
            for nt in range(6):
                for h in range(2):
                    mfma(mt, nt, 2*kq + h, XF[ps % 3] + 4*h)
                    for name in SCH[12*ps + 2*nt + h]: filler(name, t, kp)()
        stamp()

    if unroll:
        for t in range(1, NTILE): iteration(t)
        tl = NTILE
    else:
        if not ASYM:
            e('  s_branch L_mid0')
            e('.p2align 6')
            e('L_loop0:')
            iteration(0)
            e(f'  s_sub_u32 s{sCnt}, s{sCnt}, 1')
            e('L_mid0:')
            iteration(1)
            e(f'  s_sub_u32 s{sCnt}, s{sCnt}, 1')
            e('  s_cbranch_scc0 L_tst')
            e('L_tst:')
            g.L.pop(); g.L.pop()
            e(f'  s_cmp_lg_u32 s{sCnt}, 0')
            e('  s_cbranch_scc1 L_loop0')
            tl = 18
        else:
            e('.p2align 6')
            e('L_loop0:')
            iteration(1)
            e(f'  s_sub_u32 s{sCnt}, s{sCnt}, 1')
            e('L_mid0:')
            iteration(0)
            e(f'  s_sub_u32 s{sCnt}, s{sCnt}, 1')
            e(f'  s_cmp_lg_u32 s{sCnt}, 0')
            e('  s_cbranch_scc1 L_loop0')
            tl = 19
        e('L_tail:')
    t = tl
    done_or = [n[1] for gp in range(120, 144) for n in SCH[gp] if n[0] == 'or']
    done_os = [n[1] for gp in range(120, 144) for n in SCH[gp] if n[0] == 'os']
    for u in range(6):
        if u not in done_or: ord_(t, u)
    rest = [u for u in range(6) if u not in done_os]
    for u in rest[:2]: ost(t, u, 'T')
    e('  s_nop 5')
    for i in range(3):
        for k in range(4): e(cvt_i(1, 4*i + k))
        ow(1, i, t & 1, ('OW', t))
    e('  s_waitcnt lgkmcnt(0)')
    e('  s_barrier')
    for u in range(3):
        e(f'  ds_read_b128 a[{XF[0]+4*u}:{XF[0]+4*u+3}], v{vX[u]} offset:{L_O + (t & 1)*TILE + HALF}')
    for u in rest[2:]:
        e(f'  buffer_store_dwordx4 a[{OB[u]}:{OB[u]+3}], v{vG[u % 3]}, s[{sO}:{sO+3}], s{sSt0 if u < 3 else sSt1} offen{stfl(u)}')
    e(f'  s_add_u32 s{sSt1}, s{sSt0}, {HALF}')
    for u in range(3):
        e(f'  s_waitcnt lgkmcnt({2-u})')
        e(f'  buffer_store_dwordx4 a[{XF[0]+4*u}:{XF[0]+4*u+3}], v{vG[u]}, s[{sO}:{sO+3}], s{sSt1} offen{stfl(u+3)}')
    if ST:
        e('  s_waitcnt lgkmcnt(0)'); stamp(); e('  s_waitcnt vmcnt(0) lgkmcnt(0)'); stamp(); e('  s_waitcnt lgkmcnt(0)'); stamp()
        if ASYM:
            e('  s_waitcnt lgkmcnt(0)'); stamp(); e('  s_waitcnt lgkmcnt(0)'); stamp()
        for s in ('s_load_dwordx2 s[86:87], s[0:1], 40', 's_waitcnt lgkmcnt(0)', 's_getreg_b32 s92, hwreg(HW_REG_XCC_ID)',
                  f'v_writelane_b32 v{VR_}, s92, 62',
                  's_mov_b32 s88, s86', 's_and_b32 s89, s87, 0xffff', 's_mov_b32 s90, 1048576', 's_mov_b32 s91, 0x00020000',
                  's_lshl_b32 s92, s2, 11', f's_lshl_b32 s93, s{sW}, 9', 's_add_u32 s92, s92, s93',
                  'v_mbcnt_lo_u32_b32 v1, -1, 0', 'v_mbcnt_hi_u32_b32 v1, -1, v1', 'v_lshlrev_b32 v1, 2, v1',
                  f'buffer_store_dword v{VR_}, v1, s[88:91], s92 offen', f'buffer_store_dword v{VT_}, v1, s[88:91], s92 offen offset:256', 's_waitcnt vmcnt(0)'):
            e('  ' + s)
    e('  s_endpgm')
    seq = [n[0] for gp in list(range(120, 144)) + list(range(120)) for n in SCH[gp] if n[0] in ('dl', 'os')]
    after = len(seq) - 1 - max(i for i, k in enumerate(seq) if k == 'dl')
    for l in OOL:
        e(f'L_ow{l}:')
        e(f'  s_waitcnt vmcnt({after + 12})')
        e(f'  s_branch L_ob{l}')
    e('L_done:')
    e('  s_endpgm')
    e('.section .rodata,"a"')
    e('.p2align 6')
    e(f'.amdhsa_kernel {NAME}')
    e('  .amdhsa_next_free_vgpr 512')
    e('  .amdhsa_next_free_sgpr 100')
    e('  .amdhsa_accum_offset 256')
    e('  .amdhsa_group_segment_fixed_size 0')
    e('  .amdhsa_kernarg_size 48')
    e('  .amdhsa_user_sgpr_count 2')
    e('  .amdhsa_user_sgpr_kernarg_segment_ptr 1')
    e('  .amdhsa_system_sgpr_workgroup_id_x 1')
    e('  .amdhsa_float_denorm_mode_32 3')
    e('.end_amdhsa_kernel')

def schedule(opts):
    S = [[] for _ in range(144)]
    def put(ps, gp, *names): S[12*ps + gp] += list(names)
    for ps in range(12):
        put(ps, 0, ('rd', ps + 2, 0)); put(ps, 1, ('rd', ps + 2, 1))
        put(ps, 11, ('wx', ps + 1))
    S[12*9 + 11] = [('bar', 0)]
    put(9, 3, ('xr', 0)); put(9, 4, ('xr', 1)); put(9, 5, ('xr', 2)); put(9, 6, ('xr', 3))
    order = [10, 11, 0, 1, 2, 3, 4, 5, 6, 7, 8, 9]
    ep = lambda ps: 1 if ps >= 10 else 0
    put(10, 2, ('vc', 1)); put(10, 6, ('mb', 1))
    for i, u in enumerate(range(3)): put(10, 3 + i, ('or', u, 1))
    for i, u in enumerate(range(3, 6)): put(11, 3 + i, ('or', u, 1))
    for u in range(6):
        ps = order[2*u]; put(ps, 7, ('m0', u, ep(ps))); put(ps, 8, ('dl', u, ep(ps)))
        ps = order[2*u + 1]; put(ps, 8, ('os', u, ep(ps)))
    put(4, 3, ('la', 0, 0)); put(9, 2, ('la', 1, 0))
    put(9, 9, ('sa', 0, 0)); put(9, 10, ('sa', 1, 0))
    for i in range(3):
        ps = 1 + i
        for k in range(4): put(ps, 2 + k, ('cv', 1, 4*i + k, 0))
        put(ps, 6 if ps % 2 else 9, ('ow', 1, i, 0))
    put(6, 9, ('cv', 0, 0, 0)); put(6, 10, ('cv', 0, 1, 0))
    put(7, 2, ('cv', 0, 2, 0)); put(7, 3, ('cv', 0, 3, 0)); put(7, 4, ('ow', 0, 0, 0))
    put(7, 6, ('cv', 0, 4, 0)); put(7, 7, ('cv', 0, 5, 0)); put(7, 9, ('cv', 0, 6, 0)); put(7, 10, ('cv', 0, 7, 0))
    put(8, 2, ('ow', 0, 1, 0))
    put(8, 3, ('cv', 0, 8, 0)); put(8, 4, ('cv', 0, 9, 0)); put(8, 5, ('cv', 0, 10, 0)); put(8, 6, ('cv', 0, 11, 0))
    put(8, 9, ('ow', 0, 2, 0))
    return S

if __name__ == '__main__':
    out = sys.argv[1]
    opts = dict(a.split('=', 1) for a in sys.argv[2:])
    for k in ('nt_ld', 'nt_st'):
        if k in opts: opts[k] = (' ' + opts[k].replace('+', ' ')) if opts[k] != 'none' else ''
    open(out, 'w').write(gen(opts))
```

```python
import sys, re
from gen20 import regs_of, hazard_check, HDR, NAME

class G:
    def __init__(self): self.sites = {}; self.need = set(); self.reset('collect')
    def reset(self, mode): self.mode = mode; self.L = []; self.vm = []; self.lg = []; self.vd = 0; self.ld = 0
    def e(self, s): self.L.append(s)
    def vmop(self, s, tag=None): self.L.append(s); self.vm.append(tag)
    def lgop(self, s, tag=None): self.L.append(s); self.lg.append(tag)
    def _idx(self, lst, tag):
        for i in range(len(lst) - 1, -1, -1):
            if lst[i] == tag: return i
        raise KeyError(tag)
    def wait(self, key, vm=None, lg=None, pad=False):
        if self.mode == 'collect':
            cur = self.sites.get(key, (63, 15)); v, l = cur
            if vm is not None:
                i = self._idx(self.vm, vm); v = min(v, len(self.vm) - 1 - i)
                if i >= self.vd: self.need.add((key, 'v')); self.vd = i + 1
            if lg is not None:
                i = self._idx(self.lg, lg); l = min(l, len(self.lg) - 1 - i)
                if i >= self.ld: self.need.add((key, 'l')); self.ld = i + 1
            self.sites[key] = (v, l)
        v, l = self.sites[key]
        s = ''
        if vm is not None and (key, 'v') in self.need: s += f' vmcnt({v})'
        if lg is not None and (key, 'l') in self.need: s += f' lgkmcnt({l})'
        if s: self.L.append('  s_waitcnt' + s)

def gen(opts):
    g = G()
    build(g, opts, True)
    g.reset('check')
    build(g, opts, True)
    hazard_check(g.L)
    g.reset('emit')
    build(g, opts, False)
    return '\n'.join(g.L) + '\n'

def build(g, opts, unroll):
    e = g.e
    NT_LD = opts.get('nt_ld', ' nt'); NT_ST = opts.get('nt_st', ' sc1')
    ST = int(opts.get('st', 0)); CPF = int(opts.get('cpf', 1)); ASYM = int(opts.get('asym', 0)); S4 = int(opts.get('s4', 0))
    TILE = 24576; HALF = 12288; STRIDE = 256 * TILE; XB = 113246208
    NTILE = 19 if ASYM else 18
    L_O = 0; L_X = 2 * TILE; L_D = L_X + 4 * TILE; L_TOT = L_D + 4096
    vX = [1, 2, 3]; vG = [4, 5, 6]; vR = [7, 8, 9, 10]; vW = [11, 12, 13]; vBL = [14, 15, 16]; vTr = 17; vD = 18; vM = [19, 20]
    VR_, VT_ = 21, 22
    ACC = [24, 48]; DT = [72, 80, 88]; DG = [96, 102]; BV = 112; NVU = 6
    T = list(range(72, 96))
    RAWF = [144, 168]; XF = [192, 200, 208]; OB = [216 + 4*i for i in range(6)]
    sX, sO, sP, sD = 4, 8, 12, 16
    sW, sLd, sSt0, sSt1, sCnt, sM, sBs, sBo, sLd1, sMb, sDl = 20, 21, 22, 23, 32, 33, 34, 36, 37, 42, 43
    sStr, sAlt = 44, 45
    VFIRST = int(opts.get('vfirst', 0))
    def bloc(ks):
        if VFIRST: return ('v', BV + 24*ks) if ks < NVU else ('a', 24*(ks - NVU))
        return ('a', 24*ks) if ks < 12 - NVU else ('v', BV + 24*(ks - (12 - NVU)))
    def breg(ks, nt):
        f, b = bloc(ks); return f'{f}[{b+4*nt}:{b+4*nt+3}]'
    def run(items):
        for it in items:
            if callable(it): it()
            else: e(it)
    def stamp(first=False):
        if not ST: return
        if not first:
            e('  s_mov_b32 m0, s94'); e(f'  v_writelane_b32 v{VR_}, s90, m0'); e(f'  v_writelane_b32 v{VT_}, s92, m0'); e('  s_add_u32 s94, s94, 1')
        e('  s_memrealtime s[90:91]'); e('  s_memtime s[92:93]')
    def pstamp():
        if ST < 2: return
        e('  s_waitcnt lgkmcnt(0)'); stamp()
    sig = lambda t: t + 1

    e(HDR.rstrip('\n'))
    e(f'; @launch grid=(256,1,1) block=(256,1,1) lds={L_TOT}')
    e('.amdgcn_target "amdgcn-amd-amdhsa--gfx950"')
    e('.text')
    e(f'.globl {NAME}')
    e('.p2align 8')
    e(f'.type {NAME},@function')
    e(f'{NAME}:')
    e('  s_cmp_ge_u32 s2, 256')
    e('  s_cbranch_scc1 L_done')
    e('  s_load_dwordx4 s[24:27], s[0:1], 0')
    e('  s_load_dwordx4 s[28:31], s[0:1], 16')
    if ST:
        e('  s_mov_b32 s94, 0'); stamp(True)
    if CPF:
        e('  s_getpc_b64 s[40:41]')
        e('L_pc:')
        e(f'  v_lshlrev_b32 v{T[0]}, 7, v0')
        e(f'  v_min_u32 v{T[0]}, L_done-L_pc, v{T[0]}')
        e(f'  v_mov_b32 v{T[1]}, s41')
        e(f'  v_add_co_u32 v{T[0]}, vcc, s40, v{T[0]}')
        e(f'  v_lshrrev_b32 v{T[5]}, 6, v0')
        e(f'  v_and_b32 v{T[2]}, 63, v0')
        e(f'  v_addc_co_u32 v{T[1]}, vcc, 0, v{T[1]}, vcc')
        g.vmop(f'  global_load_dword v23, v[{T[0]}:{T[1]}], off')
    else:
        e(f'  v_lshrrev_b32 v{T[5]}, 6, v0')
        e(f'  v_and_b32 v{T[2]}, 63, v0')
    lane, lo4, hi2 = T[2], T[3], T[4]
    e(f'  v_readfirstlane_b32 s{sW}, v{T[5]}')
    e(f'  v_and_b32 v{lo4}, 15, v{lane}')
    e(f'  v_lshrrev_b32 v{hi2}, 4, v{lane}')
    e('  s_and_b32 s38, s2, 7')
    e('  s_lshl_b32 s38, s38, 5')
    e('  s_lshr_b32 s39, s2, 3')
    e('  s_add_u32 s38, s38, s39')
    e(f'  s_mul_i32 s{sLd}, s38, {TILE}')
    e('  s_mul_i32 s39, s39, 9216')
    e(f'  s_mul_i32 s38, s{sW}, 2304')
    e('  s_add_u32 s39, s39, s38')
    e(f'  v_lshlrev_b32 v{T[6]}, 4, v{lane}')
    e(f'  v_lshlrev_b32 v{T[7]}, 4, v{lo4}')
    def xaddr(u):
        src = 0
        if u: e(f'  v_add_u32 v{T[8]}, {256*u}, v0'); src = T[8]
        e(f'  v_mul_u32_u24 v{T[9]}, 0xaaab, v{src}')
        e(f'  v_lshrrev_b32 v{T[9]}, 21, v{T[9]}')
        e(f'  v_mul_u32_u24 v{T[10]}, 48, v{T[9]}')
        e(f'  v_sub_u32 v{T[8]}, v{src}, v{T[10]}')
        e(f'  v_xor_b32 v{T[8]}, v{T[8]}, v{T[9]}')
        e(f'  v_mul_u32_u24 v{T[9]}, 0x300, v{T[9]}')
        e(f'  v_lshl_add_u32 v{vX[u]}, v{T[8]}, 4, v{T[9]}')
    for u in range(3): xaddr(u)
    e(f'  s_lshl_b32 s{sM}, s{sW}, 10')
    e(f'  s_add_u32 s{sLd1}, s{sLd}, {HALF}')
    e(f'  s_mov_b32 s{sSt0}, s{sLd}')
    e('  s_waitcnt lgkmcnt(0)')
    def srd(sd, lo, nbytes):
        e(f'  s_mov_b32 s{sd}, s{lo}')
        e(f'  s_and_b32 s{sd+1}, s{lo+1}, 0xffff')
        e(f'  s_mov_b32 s{sd+2}, {nbytes}')
        e(f'  s_mov_b32 s{sd+3}, 0x00020000')
    srd(sP, 28, 294912)
    if int(opts.get('warm', 1)):
        g.vmop(f'  buffer_load_dwordx4 a[{OB[0]}:{OB[0]+3}], v{T[6]}, s[{sP}:{sP+3}], s39 offen')
        g.vmop(f'  buffer_load_dwordx4 a[{OB[1]}:{OB[1]+3}], v{T[6]}, s[{sP}:{sP+3}], s39 offen offset:1024')
        g.vmop(f'  buffer_load_dwordx4 a[{OB[2]}:{OB[2]+3}], v{T[7]}, s[{sP}:{sP+3}], s39 offen offset:2048')
    srd(sD, 26, 768)
    e(f'  s_add_u32 m0, s{sM}, {L_D}')
    srd(sX, 24, XB)
    g.vmop(f'  buffer_load_dwordx4 v{T[6]}, s[{sD}:{sD+3}], 0 offen lds', 'dw')
    pstamp()
    def dma_m0(t, u, mreg=None):
        if mreg is None: return f'  s_add_u32 m0, s{sM}, {L_X + (sig(t) & 3)*TILE + u*4096}'
        return f'  s_add_u32 m0, s{mreg}, {(sig(t) & 1)*TILE + u*4096}'
    def dma_ld(t, u):
        g.vmop(f'  buffer_load_dwordx4 v{vX[u % 3]}, s[{sX}:{sX+3}], s{sLd if u < 3 else sLd1} offen{NT_LD} lds', ('L', t, u))
    def xitems(t):
        it = []
        for u in range(6):
            it.append([dma_m0(t, u), '  s_nop 0', lambda u=u: dma_ld(t, u)])
        it[2].append(f'  s_add_u32 s{sLd}, s{sLd}, {STRIDE}')
        it[5].append(f'  s_add_u32 s{sLd1}, s{sLd1}, {STRIDE}')
        return it
    PF = [z.split(':') for z in opts.get('pf', '').split(',') if z]
    vP = 108; GB = int(opts.get('gb', 3))
    LPD = int(opts.get('lpd', 0)); LPF = 2 if LPD else 0
    if PF or LPD:
        e(f'  v_mul_u32_u24 v{vP}, 96, v0')
        e(f'  s_bitcmp1_b32 s2, {GB}')
        e(f'  s_cselect_b32 s47, {XB}, s{sLd}')
        e(f'  s_cselect_b32 s48, s{sLd}, {XB}')
        e(f'  s_mov_b32 s49, s{sLd}')
    def pfitems(r):
        it = []
        for (rr, t, gr) in PF:
            if int(rr) == r:
                b = {'a': 47, 'b': 48, '*': 49}[gr]
                it.append([f'  s_add_u32 s50, s{b}, {int(t)*STRIDE}', lambda: g.vmop(f'  buffer_load_dword v23, v{vP}, s[{sX}:{sX+3}], s50 offen{opts.get("pfpol", "")}')])
        return it
    XPOS = [int(z) for z in opts.get('xpos', '-1,-1,9').split(',')]
    badr = []
    for i in range(3):
        badr += [f'  v_add_u32 v{T[8]}, {64*i}, v{lane}', f'  v_mul_u32_u24 v{T[9]}, 0xaaab, v{T[8]}', f'  v_lshrrev_b32 v{T[9]}, 19, v{T[9]}',
                 f'  v_mul_u32_u24 v{T[10]}, 12, v{T[9]}', f'  v_sub_u32 v{T[10]}, v{T[8]}, v{T[10]}', f'  v_mul_u32_u24 v{T[9]}, 0x300, v{T[9]}',
                 f'  v_lshl_add_u32 v{T[9]}, v{T[10]}, 4, v{T[9]}', f'  v_add_u32 v{vBL[i]}, s38, v{T[9]}']
        if i: badr.append(f'  v_subrev_u32 v{vBL[i]}, {1024*i}, v{vBL[i]}')
    e(f'  s_mul_i32 s38, s{sW}, 192')
    for t in range(3):
        if XPOS[t] == -1:
            for grp in xitems(t):
                e(grp[0])
                if badr: run(badr[:5]); badr = badr[5:]
                else: e('  s_nop 0')
                run(grp[2:])
    run(badr)
    for grp in pfitems(-2): run(grp)
    e(f'  s_mul_i32 s{sBs}, s{sW}, 6144')
    e(f'  s_mov_b32 s{sBo}, 0')
    def bitems(ks):
        it = []
        for h in range(2):
            it.append(f'  s_add_u32 m0, s{sBs}, {(ks % 3)*TILE + h*3072}')
            if ks or h: it.append(f'  s_add_u32 s{sBo}, s{sBo}, {HALF}')
            else: it.append('  s_nop 0')
            for i in range(3):
                it.append(lambda i=i, h=h: g.vmop(f'  buffer_load_dwordx4 v{vBL[i]}, s[{sP}:{sP+3}], s{sBo} offen offset:{i*1024} lds', ('B', ks, 3*h + i)))
        return it
    run(bitems(0))
    srd(sO, 30, XB)
    e(f'  v_lshlrev_b32 v{vG[0]}, 4, v0')
    for u in range(1, 3): e(f'  v_add_u32 v{vG[u]}, {4096*u}, v{vG[0]}')
    e(f'  v_mul_u32_u24 v{T[8]}, 0x300, v{lo4}')
    e(f'  v_xor_b32 v{T[9]}, v{hi2}, v{lo4}')
    e(f'  v_lshl_add_u32 v{vR[0]}, v{T[9]}, 4, v{T[8]}')
    e(f'  v_add_u32 v{vR[0]}, {L_X}, v{vR[0]}')
    for s in range(1, 4): e(f'  v_xor_b32 v{vR[s]}, {s*64}, v{vR[0]}')
    e(f'  s_mul_i32 s38, s{sW}, 12')
    e(f'  v_mul_u32_u24 v{T[9]}, 3, v{hi2}')
    e(f'  v_add_u32 v{T[9]}, s38, v{T[9]}')
    for i in range(3):
        e(f'  v_add_u32 v{T[10]}, {i}, v{T[9]}')
        e(f'  v_xor_b32 v{T[10]}, v{T[10]}, v{lo4}')
        e(f'  v_lshl_add_u32 v{vW[i]}, v{T[10]}, 4, v{T[8]}')
    e(f'  v_lshlrev_b32 v{vD}, 4, v{hi2}')
    e(f'  v_add_u32 v{vD}, s{sM}, v{vD}')
    e(f'  v_add_u32 v{vD}, {L_D}, v{vD}')
    e(f'  v_bfe_u32 v{T[9]}, v{lane}, 2, 2')
    e(f'  v_and_b32 v{T[10]}, 3, v{lane}')
    e(f'  v_lshl_add_u32 v{T[11]}, v{hi2}, 3, v{T[9]}')
    e(f'  v_mul_u32_u24 v{T[11]}, 192, v{T[11]}')
    e(f'  v_mul_u32_u24 v{T[12]}, 48, v{T[10]}')
    e(f'  v_add3_u32 v{vTr}, v{T[11]}, v{T[12]}, s{sBs}')
    e(f'  v_lshlrev_b32 v{T[11]}, 4, v{T[10]}')
    e(f'  v_mov_b32 v{T[12]}, 0xffff')
    e(f'  v_lshlrev_b32 v{T[12]}, v{T[11]}, v{T[12]}')
    e(f'  v_cmp_eq_u32 vcc, v{hi2}, v{T[9]}')
    e(f'  v_mov_b32 v{DG[0]+2}, 0')
    e(f'  v_mov_b32 v{DG[0]+3}, 0')
    if not S4: e(f'  v_cndmask_b32 v{T[12]}, 0, v{T[12]}, vcc')
    e(f'  v_cmp_lt_u32 vcc, 1, v{T[10]}')
    e(f'  v_mov_b32 v{DG[1]+2}, 0')
    e(f'  v_mov_b32 v{DG[1]+3}, 0')
    e(f'  v_cndmask_b32 v{vM[1]}, 0, v{T[12]}, vcc')
    e(f'  v_sub_u32 v{vM[0]}, v{T[12]}, v{vM[1]}')
    e(f'  s_mov_b32 s{sSt1}, {XB}')
    e(f'  s_mov_b32 s{sStr}, {STRIDE}')
    e(f'  s_mov_b32 s{sAlt}, {32*TILE}')
    if ASYM:
        e('  s_and_b32 s38, s2, 1')
        e('  s_lshl_b32 s38, s38, 1')
        e(f'  s_sub_u32 s{sCnt}, 18, s38')
    else:
        e(f'  s_mov_b32 s{sCnt}, 17')
    run(bitems(1))
    pstamp()

    def acc(mt, nt): a = ACC[mt] + 4*nt; return f'v[{a}:{a+3}]'
    def mfma(mt, nt, ks, x):
        e(f'  v_mfma_f32_16x16x32_bf16 {acc(mt, nt)}, {breg(ks, nt)}, a[{x}:{x+3}], {"0" if ks == 0 else acc(mt, nt)}')
    def xrd(dst, slotoff, mt, ks, tag):
        g.lgop(f'  ds_read_b128 a[{dst}:{dst+3}], v{vR[ks & 3]} offset:{slotoff + mt*HALF + (ks >> 2)*256}', tag)
    def titems(ks):
        R = RAWF[ks & 1]; D = DG[ks & 1]
        it = [lambda: g.wait(('b', ks), vm=('B', ks, 5))]
        it.append(lambda: g.lgop(f'  ds_read_b64 v[{D}:{D+1}], v{vD} offset:{64*ks}', ('DW', ks)))
        it.append(lambda: g.lgop(f'  ds_read_b64 v[{D+4}:{D+5}], v{vD} offset:{64*ks + 8}', ('DW', ks)))
        for nt in range(6):
            for hh in range(2):
                it.append(lambda nt=nt, hh=hh: g.lgop(f'  ds_read_b64_tr_b16 a[{R+4*nt+2*hh}:{R+4*nt+2*hh+1}], v{vTr} offset:{(ks % 3)*TILE + hh*768 + nt*8}', ('TR', ks)))
        return it
    def mitems(ks):
        D = DG[ks & 1]
        return [lambda: g.wait(('dw', ks), lg=('DW', ks)),
                f'  v_and_b32 v{D}, v{vM[0]}, v{D}', f'  v_and_b32 v{D+1}, v{vM[1]}, v{D+1}',
                f'  v_and_b32 v{D+4}, v{vM[0]}, v{D+4}', f'  v_and_b32 v{D+5}, v{vM[1]}, v{D+5}']
    def smf(ks, nt, h):
        if S4:
            R = RAWF[ks & 1] + 4*nt + 2*h; D = DG[ks & 1] + 4*h; o = DT[nt % 3] + 4*h
            e(f'  v_mfma_f32_4x4x4_16b_bf16 v[{o}:{o+3}], v[{D}:{D+1}], a[{R}:{R+1}], 0')
            return
        R = RAWF[ks & 1] + 4*nt; D = DG[ks & 1] + 2*h; o = DT[nt % 3] + 4*h
        e(f'  v_mfma_f32_16x16x32_bf16 v[{o}:{o+3}], v[{D}:{D+3}], a[{R}:{R+3}], 0')
    def post(ks, nt):
        f, b = bloc(ks); o = DT[nt % 3]
        if f == 'v': return [f'  v_cvt_pk_bf16_f32 v{b+4*nt+q}, v{o+2*q}, v{o+2*q+1}' for q in range(4)]
        return ([f'  v_cvt_pk_bf16_f32 v{o+2*q}, v{o+2*q}, v{o+2*q+1}' for q in range(4)] +
                [f'  v_accvgpr_write_b32 a{b+4*nt+q}, v{o+2*q}' for q in range(4)])
    X0 = (sig(0) & 1) * TILE
    run(titems(0))
    run(bitems(2))
    for grp in pfitems(-1): run(grp)
    e('  s_barrier')
    assert XPOS[0] == -1
    run(mitems(0))
    for r in range(13):
        ngap = (12 if r < 12 else 0) + (12 if r >= 1 else 0)
        Q = []
        if r < 12: Q += [lambda r=r: xrd(XF[r % 3], X0, 0, r, ('PX', r)), lambda r=r: xrd(XF[r % 3] + 4, X0, 1, r, ('PX', r))]
        if r + 1 < 12: Q += titems(r + 1)
        if r + 1 < 12: Q += mitems(r + 1)
        V = []
        if r + 3 < 12:
            b = bitems(r + 3)
            V += [b[0:3], b[3:4], b[4:5], b[5:8], b[8:9], b[9:10]]
        for t in range(3):
            if XPOS[t] == r: V += xitems(t)
        if pfitems(r): V.append(sum(pfitems(r), []))
        GQ = [[] for _ in range(ngap)]
        for i, x in enumerate(Q): GQ[(i*ngap)//len(Q)].append(x)
        VO = int(opts.get('vo', 1))
        for i, x in enumerate(V): GQ[min(ngap - 1, (i*ngap)//len(V) + VO)] += x
        if r < 12: g.wait(('tr', r), lg=('TR', r))
        if r >= 1: g.wait(('px', r), lg=('PX', r - 1))
        e('  s_nop 0')
        gi = 0
        for nt in range(6):
            P = post(r, nt - 2) if (nt >= 2 and r < 12) else (post(r - 1, nt + 4) if (nt < 2 and r >= 1) else [])
            M = []
            if r < 12: M += [lambda nt=nt: smf(r, nt, 0), lambda nt=nt: smf(r, nt, 1)]
            if r >= 1: M += [lambda nt=nt: mfma(0, nt, r - 1, XF[(r - 1) % 3]), lambda nt=nt: mfma(1, nt, r - 1, XF[(r - 1) % 3] + 4)]
            if r == 0 and P: e('  s_nop 3')
            for k, m in enumerate(M):
                m()
                run(P[(k*len(P))//len(M):((k+1)*len(P))//len(M)])
                run(GQ[gi]); gi += 1
        if r in (0, 3, 7, 11): pstamp()

    def cvt_i(mt, d): a = ACC[mt]; return f'  v_cvt_pk_bf16_f32 v{a+d}, v{a+2*d}, v{a+2*d+1}'
    def ow(mt, i, par, tag):
        a = ACC[mt] + 4*i
        g.lgop(f'  ds_write_b128 v{vW[i]}, v[{a}:{a+3}] offset:{L_O + par*TILE + mt*HALF}', tag)
    def ord_(t, u):
        g.lgop(f'  ds_read_b128 a[{OB[u]}:{OB[u]+3}], v{vX[u % 3]} offset:{L_O + ((t - 1) & 1)*TILE + (u // 3)*HALF}', ('O', t, u))
    MIX = opts.get('mix', '')
    def stfl(u): return ' nt' if str(u) in MIX else NT_ST
    def ost(t, u, key):
        g.wait((key, 'o', u), lg=('O', t, u))
        g.vmop(f'  buffer_store_dwordx4 a[{OB[u]}:{OB[u]+3}], v{vG[u % 3]}, s[{sO}:{sO+3}], s{sSt0 if u < 3 else sSt1} offen{stfl(u)}')
    def prd(t, ps, h):
        mt, kp = ps // 6, ps % 6
        xrd(XF[ps % 3] + 4*h, (sig(t) & 1)*TILE, mt, 2*kp + h, ('X', t, ps))

    e('  s_barrier')
    for r in vR: e(f'  v_xor_b32 v{r}, 0x14000, v{r}')
    e('  s_nop 1')
    for i in range(3):
        for k in range(4): e(cvt_i(0, 4*i + k))
        ow(0, i, 0, ('OW', 0))
    for grp in xitems(3): run(grp)
    g.wait('pre', vm=('L', 1, 5), lg=('OW', 0))
    e('  s_barrier')
    SCH = schedule(opts)
    lab = [0]; OOL = []
    def filler(name, t, kp):
        kind = name[0]
        if kind == 'rd': return lambda: prd(t + (name[1] >= 12), name[1] % 12, name[2])
        if kind == 'wx': return lambda: g.wait((kp, 'x', name[1]), lg=('X', t + (name[1] >= 12), name[1] % 12))
        ep = t + name[-1]
        if kind == 'or': return lambda: ord_(ep, name[1])
        if kind == 'os': return lambda: ost(ep, name[1], kp)
        if kind == 'm0': return lambda: e(dma_m0(ep + 3, name[1], sMb))
        if kind == 'dl':
            def f():
                lab[0] += 1
                if not unroll: e(f'  s_cbranch_vccz L_sk{lab[0]}')
                else: e('  s_nop 0')
                dma_ld(ep + 3, name[1])
                if not unroll: e(f'L_sk{lab[0]}:')
            return f
        if kind == 'cv': return lambda: e(cvt_i(name[1], name[2]))
        if kind == 'ow': return lambda: ow(name[1], name[2], ep & 1, ('OW', ep))
        if kind == 'la':
            if not ASYM: return lambda: e(f'  s_add_u32 s{[sLd, sLd1][name[1]]}, s{[sLd, sLd1][name[1]]}, s{sStr}')
            if name[1] == 0: return lambda: run([f'  s_cmp_eq_u32 s{sCnt}, 5', f'  s_cselect_b32 s{sDl}, s{sAlt}, s{sStr}', f'  s_add_u32 s{sLd}, s{sLd}, s{sDl}'])
            return lambda: e(f'  s_add_u32 s{sLd1}, s{sLd1}, s{sDl}')
        if kind == 'sa':
            if name[1] == 0: return lambda: e(f'  s_add_u32 s{sSt1}, s{sSt0}, {HALF}')
            if not ASYM: return lambda: e(f'  s_add_u32 s{sSt0}, s{sSt0}, s{sStr}')
            return lambda: run([f'  s_cmp_eq_u32 s{sCnt}, s46', f'  s_cselect_b32 s{sDl}, s{sAlt}, s{sStr}', f'  s_add_u32 s{sSt0}, s{sSt0}, s{sDl}'])
        if kind == 'mb':
            def f():
                if sig(ep + 3) % 2 == 0: e(f'  s_xor_b32 s{sMb}, s{sMb}, 0x14000')
            return f
        if kind == 'pf':
            return lambda: run([f'  s_add_u32 s50, s{sLd}, {LPD*STRIDE}', lambda: g.vmop(f'  buffer_load_dword v23, v{vP}, s[{sX}:{sX+3}], s50 offen')])
        if kind == 'vc':
            return lambda: run([f'  s_cmp_ge_u32 s{sCnt}, 5', '  s_cselect_b64 vcc, -1, 0'])
        if kind == 'xr':
            return lambda: (e(f'  v_xor_b32 v{vR[name[1]]}, 0x14000, v{vR[name[1]]}') if sig(t + 1) % 2 == 0 else None)
        if kind == 'bar':
            def f():
                lab[0] += 1
                if unroll and t == 1:
                    g.wait('bar1', vm=('L', t + 1, 5))
                    g.wait((kp, 'bar'), lg=g.lg[-1] if g.mode == 'collect' else 0)
                else:
                    g.wait((kp, 'bar'), vm=('L', t + 1, 5), lg=g.lg[-1] if g.mode == 'collect' else 0)
                if not unroll:
                    if kp == 1: e(f'  s_cbranch_scc1 L_o1')
                    e(f'  s_cbranch_vccz L_ow{lab[0]}')
                    e(f'L_ob{lab[0]}:')
                    OOL.append((lab[0], kp))
                e('  s_barrier')
            return f
        if kind == 'fc':
            return lambda: (e(f'  s_cmp_eq_u32 s{sCnt}, s51') if kp == 1 else None)
        raise KeyError(name)
    pb = lambda t: L_X + ((sig(t) & 3) >> 1) * 2 * TILE
    first_base = pb(4) ^ (0x14000 if sig(4) % 2 == 0 else 0)
    e(f'  s_add_u32 s{sMb}, s{sM}, {first_base}')
    e('  s_mov_b64 vcc, -1')
    e(f'  s_mov_b32 s51, s{sCnt}')
    if ASYM:
        e('  s_bitcmp1_b32 s2, 0')
        e('  s_cselect_b32 s46, 0, 1')
        e(f'  s_cselect_b32 s{sAlt}, s{sStr}, s{sAlt}')
    for gp in range(120, 144):
        for name in SCH[gp]:
            if name[0] in ('xr', 'bar', 'vc') or (name[0] == 'wx' and name[1] < 12): continue
            filler(name, 0, 'pre')()
    stamp()

    def iteration(t):
        kp = t & 1
        for ps in range(12):
            mt, kq = ps // 6, ps % 6
            for nt in range(6):
                for h in range(2):
                    mfma(mt, nt, 2*kq + h, XF[ps % 3] + 4*h)
                    for name in SCH[12*ps + 2*nt + h]: filler(name, t, kp)()
        stamp()

    if unroll:
        for t in range(1, NTILE): iteration(t)
        tl = NTILE
    else:
        if not ASYM:
            e('  s_branch L_mid0')
            e('.p2align 6')
            e('L_loop0:')
            iteration(0)
            e(f'  s_sub_u32 s{sCnt}, s{sCnt}, 1')
            e('L_mid0:')
            iteration(1)
            e(f'  s_sub_u32 s{sCnt}, s{sCnt}, 1')
            e('  s_cbranch_scc0 L_tst')
            e('L_tst:')
            g.L.pop(); g.L.pop()
            e(f'  s_cmp_lg_u32 s{sCnt}, 0')
            e('  s_cbranch_scc1 L_loop0')
            tl = 18
        else:
            e('.p2align 6')
            e('L_loop0:')
            iteration(1)
            e(f'  s_sub_u32 s{sCnt}, s{sCnt}, 1')
            e('L_mid0:')
            iteration(0)
            e(f'  s_sub_u32 s{sCnt}, s{sCnt}, 1')
            e(f'  s_cmp_lg_u32 s{sCnt}, 0')
            e('  s_cbranch_scc1 L_loop0')
            tl = 19
        e('L_tail:')
    t = tl
    done_or = [n[1] for gp in range(120, 144) for n in SCH[gp] if n[0] == 'or']
    done_os = [n[1] for gp in range(120, 144) for n in SCH[gp] if n[0] == 'os']
    for u in range(6):
        if u not in done_or: ord_(t, u)
    rest = [u for u in range(6) if u not in done_os]
    for u in rest[:2]: ost(t, u, 'T')
    e('  s_nop 5')
    for i in range(3):
        for k in range(4): e(cvt_i(1, 4*i + k))
        ow(1, i, t & 1, ('OW', t))
    e('  s_waitcnt lgkmcnt(0)')
    e('  s_barrier')
    for u in range(3):
        e(f'  ds_read_b128 a[{XF[0]+4*u}:{XF[0]+4*u+3}], v{vX[u]} offset:{L_O + (t & 1)*TILE + HALF}')
    for u in rest[2:]:
        e(f'  buffer_store_dwordx4 a[{OB[u]}:{OB[u]+3}], v{vG[u % 3]}, s[{sO}:{sO+3}], s{sSt0 if u < 3 else sSt1} offen{stfl(u)}')
    e(f'  s_add_u32 s{sSt1}, s{sSt0}, {HALF}')
    for u in range(3):
        e(f'  s_waitcnt lgkmcnt({2-u})')
        e(f'  buffer_store_dwordx4 a[{XF[0]+4*u}:{XF[0]+4*u+3}], v{vG[u]}, s[{sO}:{sO+3}], s{sSt1} offen{stfl(u+3)}')
    if ST:
        e('  s_waitcnt lgkmcnt(0)'); stamp(); e('  s_waitcnt vmcnt(0) lgkmcnt(0)'); stamp(); e('  s_waitcnt lgkmcnt(0)'); stamp()
        if ASYM:
            e('  s_waitcnt lgkmcnt(0)'); stamp(); e('  s_waitcnt lgkmcnt(0)'); stamp()
        for s in ('s_load_dwordx2 s[86:87], s[0:1], 40', 's_waitcnt lgkmcnt(0)', 's_getreg_b32 s92, hwreg(HW_REG_XCC_ID)',
                  f'v_writelane_b32 v{VR_}, s92, 62',
                  's_mov_b32 s88, s86', 's_and_b32 s89, s87, 0xffff', 's_mov_b32 s90, 1048576', 's_mov_b32 s91, 0x00020000',
                  's_lshl_b32 s92, s2, 11', f's_lshl_b32 s93, s{sW}, 9', 's_add_u32 s92, s92, s93',
                  'v_mbcnt_lo_u32_b32 v1, -1, 0', 'v_mbcnt_hi_u32_b32 v1, -1, v1', 'v_lshlrev_b32 v1, 2, v1',
                  f'buffer_store_dword v{VR_}, v1, s[88:91], s92 offen', f'buffer_store_dword v{VT_}, v1, s[88:91], s92 offen offset:256', 's_waitcnt vmcnt(0)'):
            e('  ' + s)
    e('  s_endpgm')
    seq = [n[0] for gp in list(range(120, 144)) + list(range(120)) for n in SCH[gp] if n[0] in ('dl', 'os')]
    after = len(seq) - 1 - max(i for i, k in enumerate(seq) if k == 'dl')
    for l, kp in OOL:
        if kp == 1:
            e('L_o1:')
            g.wait('bar1', vm=0)
            e(f'  s_branch L_ob{l}')
        e(f'L_ow{l}:')
        e(f'  s_cmp_eq_u32 s{sCnt}, 1')
        e(f'  s_cbranch_scc1 L_ob{l}')
        e(f'  s_waitcnt vmcnt({after + 18 + LPF})')
        e(f'  s_cmp_eq_u32 s{sCnt}, 3')
        e(f'  s_cbranch_scc1 L_ob{l}')
        e(f'  s_waitcnt vmcnt({after + 12 + LPF})')
        e(f'  s_branch L_ob{l}')
    e('L_done:')
    e('  s_endpgm')
    e('.section .rodata,"a"')
    e('.p2align 6')
    e(f'.amdhsa_kernel {NAME}')
    e('  .amdhsa_next_free_vgpr 512')
    e('  .amdhsa_next_free_sgpr 100')
    e('  .amdhsa_accum_offset 256')
    e('  .amdhsa_group_segment_fixed_size 0')
    e('  .amdhsa_kernarg_size 48')
    e('  .amdhsa_user_sgpr_count 2')
    e('  .amdhsa_user_sgpr_kernarg_segment_ptr 1')
    e('  .amdhsa_system_sgpr_workgroup_id_x 1')
    e('  .amdhsa_float_denorm_mode_32 3')
    e('.end_amdhsa_kernel')

def schedule(opts):
    S = [[] for _ in range(144)]
    def put(ps, gp, *names): S[12*ps + gp] += list(names)
    for ps in range(12):
        put(ps, 0, ('rd', ps + 2, 0)); put(ps, 1, ('rd', ps + 2, 1))
        put(ps, 11, ('wx', ps + 1))
    S[12*9 + 11] = [('fc', 0), ('bar', 0)]
    put(9, 3, ('xr', 0)); put(9, 4, ('xr', 1)); put(9, 5, ('xr', 2)); put(9, 6, ('xr', 3))
    order = [10, 11, 0, 1, 2, 3, 4, 5, 6, 7, 8, 9]
    ep = lambda ps: 1 if ps >= 10 else 0
    put(10, 2, ('vc', 1)); put(10, 6, ('mb', 1))
    for i, u in enumerate(range(3)): put(10, 3 + i, ('or', u, 1))
    for i, u in enumerate(range(3, 6)): put(11, 3 + i, ('or', u, 1))
    for u in range(6):
        ps = order[2*u]; put(ps, 7, ('m0', u, ep(ps))); put(ps, 8, ('dl', u, ep(ps)))
        ps = order[2*u + 1]; put(ps, 8, ('os', u, ep(ps)))
    if int(opts.get('lpd', 0)): put(0, 4, ('pf', 0))
    put(4, 3, ('la', 0, 0)); put(9, 2, ('la', 1, 0))
    put(9, 9, ('sa', 0, 0)); put(9, 10, ('sa', 1, 0))
    for i in range(3):
        ps = 1 + i
        for k in range(4): put(ps, 2 + k, ('cv', 1, 4*i + k, 0))
        put(ps, 6 if ps % 2 else 9, ('ow', 1, i, 0))
    put(6, 9, ('cv', 0, 0, 0)); put(6, 10, ('cv', 0, 1, 0))
    put(7, 2, ('cv', 0, 2, 0)); put(7, 3, ('cv', 0, 3, 0)); put(7, 4, ('ow', 0, 0, 0))
    put(7, 6, ('cv', 0, 4, 0)); put(7, 7, ('cv', 0, 5, 0)); put(7, 9, ('cv', 0, 6, 0)); put(7, 10, ('cv', 0, 7, 0))
    put(8, 2, ('ow', 0, 1, 0))
    put(8, 3, ('cv', 0, 8, 0)); put(8, 4, ('cv', 0, 9, 0)); put(8, 5, ('cv', 0, 10, 0)); put(8, 6, ('cv', 0, 11, 0))
    put(8, 9, ('ow', 0, 2, 0))
    return S

if __name__ == '__main__':
    out = sys.argv[1]
    opts = dict(a.split('=', 1) for a in sys.argv[2:])
    for k in ('nt_ld', 'nt_st'):
        if k in opts: opts[k] = (' ' + opts[k].replace('+', ' ')) if opts[k] != 'none' else ''
    open(out, 'w').write(gen(opts))
```

```python
import sys, re
from gen20 import regs_of, hazard_check, HDR, NAME
from gen21 import G

def gen(opts):
    g = G()
    build(g, opts, True)
    g.reset('check')
    build(g, opts, True)
    hazard_check(g.L)
    g.reset('emit')
    build(g, opts, False)
    return '\n'.join(g.L) + '\n'

def build(g, opts, unroll):
    e = g.e
    I = lambda k, d: int(opts.get(k, d))
    NT_LD = opts.get('nt_ld', ' nt'); NT_ST = opts.get('nt_st', ' sc1')
    ST = I('st', 0); CPF = I('cpf', 1); ASYM = 0; DYN = 1; NS = I('ns', 4); RF = I('rf', 4); PM = I('pm', 0); DUM = I('dum', 0)
    assert not (ASYM and DYN)
    TILE = 24576; HALF = 12288; STRIDE = 256 * TILE; XB = 113246208
    NTILE = 19 if ASYM else 18
    SST = I('sst', 15); T1 = 0; LA = I('la', 3); WIN = I('win', 0)
    NPOOL = (4608 - SST*256) // 4
    L_O = 0; L_X = 2 * TILE; L_D = L_X + 4 * TILE; L_TOT = L_D + 4096
    vX = [1, 2, 3]; vG = [4, 5, 6]; vR = [7, 8, 9, 10]; vW = [11, 12, 13]; vBL = [14, 15, 16]; vTr = [17, 104]; vD = 18; vM = [19, 20]
    VR_, VT_ = 21, 22; vZ = 23
    ACC = [24, 48]; DT = [72, 80, 88]; DG = [96, 100]; vMB = 105; vMW = 106; vTk = 107; vP = 108; BV = 112; NVU = 6
    T = list(range(72, 96))
    RAWF = [144, 168]; XF = [192, 200, 208]; OB = [216 + 4*i for i in range(6)]
    sX, sO, sP, sD = 4, 8, 12, 16
    sW, sLd, sSt0, sSt1, sCnt, sM, sBs, sBo, sLd1, sMb, sDl = 20, 21, 22, 23, 32, 33, 34, 36, 37, 42, 43
    sStr, sAlt = 44, 45
    VFIRST = I('vfirst', 0)
    def bloc(ks):
        if VFIRST: return ('v', BV + 24*ks) if ks < NVU else ('a', 24*(ks - NVU))
        return ('a', 24*ks) if ks < 12 - NVU else ('v', BV + 24*(ks - (12 - NVU)))
    def breg(ks, nt):
        f, b = bloc(ks); return f'{f}[{b+4*nt}:{b+4*nt+3}]'
    def run(items):
        for it in items:
            if callable(it): it()
            else: e(it)
    def stamp(first=False):
        if not ST: return
        if not first:
            e('  s_mov_b32 m0, s94'); e(f'  v_writelane_b32 v{VR_}, s90, m0'); e(f'  v_writelane_b32 v{VT_}, s92, m0'); e('  s_add_u32 s94, s94, 1')
        e('  s_memrealtime s[90:91]'); e('  s_memtime s[92:93]')
    def pstamp():
        if ST < 2: return
        e('  s_waitcnt lgkmcnt(0)'); stamp()
    sig = lambda t: t + NS - 2
    slot = lambda ks: (ks + (14 % NS if NS == 4 else (2 if NS == 3 else 0))) % NS
    assert slot(10) == 0 and slot(11) == 1
    def ring_free_unit(t):
        s = (sig(t) & 3) + 2
        ks = [k for k in range(12) if slot(k) == s]
        return ks[-1] if ks else -1

    e(HDR.rstrip('\n'))
    e(f'; @launch grid=(256,1,1) block=(256,1,1) lds={L_TOT}')
    e('.amdgcn_target "amdgcn-amd-amdhsa--gfx950"')
    e('.text')
    e(f'.globl {NAME}')
    e('.p2align 8')
    e(f'.type {NAME},@function')
    e(f'{NAME}:')
    e('  s_cmp_ge_u32 s2, 256')
    e('  s_cbranch_scc1 L_done')
    e('  s_load_dwordx4 s[28:31], s[0:1], 16')
    e('  s_load_dwordx4 s[24:27], s[0:1], 0')
    if DYN: e('  s_load_dwordx2 s[52:53], s[0:1], 32')
    if ST:
        e('  s_mov_b32 s94, 0'); stamp(True)
    lane, lo4, hi2 = T[2], T[3], T[4]
    if CPF:
        e('  s_getpc_b64 s[40:41]')
        e('L_pc:')
        e(f'  v_lshlrev_b32 v{T[0]}, 7, v0')
        e(f'  v_min_u32 v{T[0]}, L_done-L_pc, v{T[0]}')
        e(f'  v_mov_b32 v{T[1]}, s41')
        e(f'  v_add_co_u32 v{T[0]}, vcc, s40, v{T[0]}')
        e(f'  v_lshrrev_b32 v{T[5]}, 6, v0')
        e(f'  v_and_b32 v{lane}, 63, v0')
        e(f'  v_addc_co_u32 v{T[1]}, vcc, 0, v{T[1]}, vcc')
        g.vmop(f'  global_load_dword v{vZ}, v[{T[0]}:{T[1]}], off')
    else:
        e(f'  v_lshrrev_b32 v{T[5]}, 6, v0')
        e(f'  v_and_b32 v{lane}, 63, v0')
    e(f'  v_readfirstlane_b32 s{sW}, v{T[5]}')
    e(f'  v_and_b32 v{lo4}, 15, v{lane}')
    e(f'  v_lshlrev_b32 v{T[6]}, 4, v{lane}')
    e(f'  v_lshlrev_b32 v{T[7]}, 4, v{lo4}')
    e('  s_lshr_b32 s47, s2, 3')
    e('  s_mul_i32 s39, s47, 9216')
    e(f'  s_mul_i32 s38, s{sW}, 2304')
    e('  s_add_u32 s39, s39, s38')
    e(f'  s_mul_i32 s38, s{sW}, 192')
    for i in range(3):
        src = lane
        if i: e(f'  v_add_u32 v{T[8]}, {64*i}, v{lane}'); src = T[8]
        run([f'  v_mul_u32_u24 v{T[9]}, 0xaaab, v{src}', f'  v_lshrrev_b32 v{T[9]}, 19, v{T[9]}',
             f'  v_mul_u32_u24 v{T[9]}, 576, v{T[9]}',
             f'  v_add3_u32 v{vBL[i]}, v{T[9]}, v{T[6]}, s38'])
    e(f'  s_lshl_b32 s{sM}, s{sW}, 10')
    e(f'  s_mul_i32 s{sBs}, s{sW}, 6144')
    e(f'  s_mov_b32 s{sBo}, 0')
    e(f'  s_mov_b32 s{sP+2}, 294912')
    e(f'  s_mov_b32 s{sP+3}, 0x00020000')
    e(f'  s_mov_b32 s{sD+2}, 768')
    e(f'  s_mov_b32 s{sD+3}, 0x00020000')
    e(f'  s_add_u32 m0, s{sM}, {L_D}')
    e('  s_waitcnt lgkmcnt(0)')
    def srd(sd, lo, nbytes=None):
        e(f'  s_mov_b32 s{sd}, s{lo}')
        e(f'  s_and_b32 s{sd+1}, s{lo+1}, 0xffff')
        if nbytes:
            e(f'  s_mov_b32 s{sd+2}, {nbytes}')
            e(f'  s_mov_b32 s{sd+3}, 0x00020000')
    srd(sP, 28)
    if I('warm', 1):
        g.vmop(f'  buffer_load_dwordx4 a[{OB[0]}:{OB[0]+3}], v{T[6]}, s[{sP}:{sP+3}], s39 offen')
        g.vmop(f'  buffer_load_dwordx4 a[{OB[1]}:{OB[1]+3}], v{T[6]}, s[{sP}:{sP+3}], s39 offen offset:1024')
        g.vmop(f'  buffer_load_dwordx4 a[{OB[2]}:{OB[2]+3}], v{T[7]}, s[{sP}:{sP+3}], s39 offen offset:2048')
    srd(sD, 26)
    g.vmop(f'  buffer_load_dwordx4 v{T[6]}, s[{sD}:{sD+3}], 0 offen lds', 'dw')
    pstamp()
    def bitems(ks):
        it = []
        for h in range(2):
            pre = [f'  s_add_u32 m0, s{sBs}, {slot(ks)*TILE + h*3072}', f'  s_add_u32 s{sBo}, s{sBo}, {HALF}' if (ks or h) else '  s_nop 0']
            for i in range(3):
                ld = lambda i=i, h=h: g.vmop(f'  buffer_load_dwordx4 v{vBL[i]}, s[{sP}:{sP+3}], s{sBo} offen offset:{i*1024} lds', ('B', ks, 3*h + i))
                ld.dma = True
                it.append((pre if i == 0 else []) + [ld])
        return it
    def dma_m0(t, u, mreg=None):
        if mreg is None: return f'  s_add_u32 m0, s{sM}, {L_X + (sig(t) & 3)*TILE + u*4096}'
        return f'  s_add_u32 m0, s{mreg}, {(sig(t) & 1)*TILE + u*4096}'
    def dma_ld(t, u):
        g.vmop(f'  buffer_load_dwordx4 v{vX[u % 3]}, s[{sX}:{sX+3}], s{sLd if u < 3 else sLd1} offen{NT_LD} lds', ('L', t, u))
    def xitems(t):
        it = []
        for u in range(6):
            ld = lambda u=u: dma_ld(t, u)
            ld.dma = True
            it.append([dma_m0(t, u), '  s_nop 0', ld])
        it[3][1] = f'  s_add_u32 s{sLd}, s{sLd}, {STRIDE}'
        it[5].append(f'  s_add_u32 s{sLd1}, s{sLd1}, {STRIDE}')
        return it
    PLAN = opts.get('plan', 'b0.b1.b2.b3.x0.b4.b5.b6.b7.b8.b9.b10.b11.x1.x2.x3').split('.')
    CAP = [int(z) for z in opts.get('cap', '12,6,12,12,6,6,6,6,6,6,6,6,6,6,6').split(',')]
    VQ = []
    for it in PLAN:
        k = int(it[1:])
        if it[0] == 'p':
            VQ.append((it, 0, -9)); continue
        early = (k - NS if k >= NS else -9) if it[0] == 'b' else (ring_free_unit(k) if ring_free_unit(k) >= 0 else -9)
        VQ += [(it, j, early) for j in range(6)]
    def vtake(r, n):
        out = []
        while VQ and VQ[0][2] <= r and (len(out) < n or (VQ[0][0][0] == 'b' and VQ[0][1] % 3)):
            out.append(VQ.pop(0))
        return out
    def vgroups(lst):
        pitems = lambda t: [[f'  s_add_u32 s50, s{sSt0}, {t*STRIDE}', lambda: g.vmop(f'  buffer_load_dword v{vZ}, v{vP}, s[{sX}:{sX+3}], s50 offen')]]
        return [{'b': bitems, 'x': xitems, 'p': pitems}[it[0]](int(it[1:]))[j] for (it, j, _) in lst]
    def xsetup():
        e('  s_and_b32 s38, s2, 7')
        e('  s_lshl_b32 s38, s38, 5')
        e('  s_add_u32 s38, s38, s47')
        e(f'  s_mul_i32 s{sLd}, s38, {TILE}')
        srd(sX, 24, XB)
        for u in range(3):
            src = 0
            if u: e(f'  v_add_u32 v{T[8]}, {256*u}, v0'); src = T[8]
            e(f'  v_mul_u32_u24 v{T[9]}, 0xaaab, v{src}')
            e(f'  v_lshrrev_b32 v{T[9]}, 21, v{T[9]}')
            e(f'  v_xor_b32 v{T[8]}, v{src}, v{T[9]}')
            e(f'  v_lshlrev_b32 v{vX[u]}, 4, v{T[8]}')
        e(f'  s_add_u32 s{sLd1}, s{sLd}, {HALF}')
        e(f'  s_mov_b32 s{sSt0}, s{sLd}')
        if any(it[0] == 'p' for it in PLAN): e(f'  v_mul_u32_u24 v{vP}, 96, v0')
    V0 = vtake(-2, CAP[0])
    if V0[0][0][0] == 'x': xsetup()
    for grp in vgroups(V0[:6]): run(grp)
    if V0[0][0][0] != 'x': xsetup()
    e(f'  v_lshrrev_b32 v{hi2}, 4, v{lane}')
    e(f'  v_lshlrev_b32 v{vD}, 4, v{hi2}')
    e(f'  v_add_u32 v{vD}, s{sM}, v{vD}')
    e(f'  v_add_u32 v{vD}, {L_D}, v{vD}')
    e(f'  v_bfe_u32 v{T[9]}, v{lane}, 2, 2')
    e(f'  v_and_b32 v{T[10]}, 3, v{lane}')
    e(f'  v_lshl_add_u32 v{T[11]}, v{hi2}, 3, v{T[9]}')
    e(f'  v_mul_u32_u24 v{T[11]}, 192, v{T[11]}')
    e(f'  v_mul_u32_u24 v{T[12]}, 48, v{T[10]}')
    e(f'  v_add3_u32 v{vTr[0]}, v{T[11]}, v{T[12]}, s{sBs}')
    e(f'  v_add_u32 v{vTr[1]}, {2*TILE}, v{vTr[0]}')
    e(f'  v_lshlrev_b32 v{T[11]}, 4, v{T[10]}')
    e(f'  v_mov_b32 v{T[12]}, 0xffff')
    e(f'  v_cmp_lt_u32 vcc, 1, v{T[10]}')
    e(f'  v_lshlrev_b32 v{T[12]}, v{T[11]}, v{T[12]}')
    e(f'  v_mul_u32_u24 v{T[8]}, 0x300, v{lo4}')
    e(f'  v_cndmask_b32 v{vM[1]}, 0, v{T[12]}, vcc')
    e(f'  v_sub_u32 v{vM[0]}, v{T[12]}, v{vM[1]}')
    for grp in vgroups(V0[6:12]): run(grp)
    srd(sO, 30, XB)
    e(f'  v_lshlrev_b32 v{vG[0]}, 4, v0')
    for u in range(1, 3): e(f'  v_add_u32 v{vG[u]}, {4096*u}, v{vG[0]}')
    e(f'  v_xor_b32 v{T[9]}, v{hi2}, v{lo4}')
    e(f'  v_lshl_add_u32 v{vR[0]}, v{T[9]}, 4, v{T[8]}')
    pb = lambda t: L_X + ((sig(t) & 3) >> 1) * 2 * TILE
    e(f'  v_add_u32 v{vR[0]}, {pb(0)}, v{vR[0]}')
    for s in range(1, 4): e(f'  v_xor_b32 v{vR[s]}, {s*64}, v{vR[0]}')
    e(f'  s_mul_i32 s38, s{sW}, 12')
    e(f'  v_mul_u32_u24 v{T[9]}, 3, v{hi2}')
    e(f'  v_add_u32 v{T[9]}, s38, v{T[9]}')
    for i in range(3):
        e(f'  v_add_u32 v{T[10]}, {i}, v{T[9]}')
        e(f'  v_xor_b32 v{T[10]}, v{T[10]}, v{lo4}')
        e(f'  v_lshl_add_u32 v{vW[i]}, v{T[10]}, 4, v{T[8]}')
    e(f'  s_mov_b32 s{sSt1}, {XB}')
    e(f'  s_mov_b32 s{sStr}, {STRIDE}')
    e(f'  s_add_u32 s{sMb}, s{sM}, {pb(LA + 1) ^ (0x14000 if sig(LA + 1) % 2 == 0 else 0)}')
    e('  s_mov_b32 s51, 1')
    if ASYM:
        e('  s_bitcmp1_b32 s2, 0')
        e(f'  s_cselect_b32 s{sCnt}, 16, 18')
        e(f'  s_cselect_b32 s{sAlt}, s{sStr}, {32*TILE}')
    elif DYN:
        if PM:
            e('  s_bfe_u32 s38, s2, 0x20001')
            e(f'  s_mul_i32 s57, s38, {64*TILE}')
        else:
            e('  s_and_b32 s38, s47, 3')
            e(f'  s_mul_i32 s57, s38, {TILE}')
        e(f'  s_add_u32 s57, s57, {SST*STRIDE}')
        e('  s_lshl_b32 s38, s38, 6')
        e('  s_add_u32 s52, s52, s38')
        e('  s_addc_u32 s53, s53, 0')
        e('  s_bitcmp1_b32 s2, 0')
        e(f'  s_mov_b32 s55, {NPOOL}')
        e(f'  s_cselect_b32 s55, {NPOOL - I("bias", 0)}, s55')
        e(f'  s_cmp_eq_u32 s{sW}, 0')
        e('  s_cselect_b32 s66, s55, 0')
        e('  s_mov_b32 s55, 0')
        e('  s_mov_b32 s65, 0')
        e(f'  s_mov_b32 s61, {SST - LA - 2}')
        e(f'  s_add_u32 s62, s{sSt0}, {(LA+1)*STRIDE}')
        e('  s_mov_b32 s54, 0')
        for k in range(LA): e(f'  s_add_u32 s{58+k}, s{sSt0}, {(k+1)*STRIDE}')
        e(f'  s_mov_b32 s{sCnt}, {LA + 1}')
        e(f'  v_mov_b32 v{vMB}, {L_D}')
        e(f'  v_add_u32 v{vMW}, s{sM}, v{vMB}')
    else:
        e(f'  s_mov_b32 s{sCnt}, 17')
    lab = [0]
    def claim():
        lab[0] += 1
        e('  s_cmp_lt_u32 s54, s55')
        e('  s_cselect_b32 s54, 1, s65')
        e(f'  s_cbranch_scc0 L_cl{lab[0]}')
        e('  s_atomic_add s54, s[52:53], 0 glc')
        e(f'L_cl{lab[0]}:')
    pstamp()

    def acc(mt, nt): a = ACC[mt] + 4*nt; return f'v[{a}:{a+3}]'
    def mfma(mt, nt, ks, x):
        e(f'  v_mfma_f32_16x16x32_bf16 {acc(mt, nt)}, {breg(ks, nt)}, a[{x}:{x+3}], {"0" if ks == 0 else acc(mt, nt)}')
    def xrd(dst, slotoff, mt, ks, tag):
        g.lgop(f'  ds_read_b128 a[{dst}:{dst+3}], v{vR[ks & 3]} offset:{slotoff + mt*HALF + (ks >> 2)*256}', tag)
    def titems(ks):
        R = RAWF[ks & 1]; D = DG[ks & 1]; s = slot(ks)
        it = [lambda: g.wait(('b', ks), vm=('B', ks, 5))]
        it.append(lambda: g.lgop(f'  ds_read_b128 v[{D}:{D+3}], v{vD} offset:{64*ks}', ('DW', ks)))
        for nt in range(6):
            for hh in range(2):
                it.append(lambda nt=nt, hh=hh: g.lgop(f'  ds_read_b64_tr_b16 a[{R+4*nt+2*hh}:{R+4*nt+2*hh+1}], v{vTr[s >> 1]} offset:{(s & 1)*TILE + hh*768 + nt*8}', ('TR', ks, nt)))
        return it
    def mitems(ks):
        D = DG[ks & 1]
        return [lambda: g.wait(('dw', ks), lg=('DW', ks))] + [f'  v_and_b32 v{D+q}, v{vM[q & 1]}, v{D+q}' for q in range(4)]
    def smf(ks, nt, h):
        R = RAWF[ks & 1] + 4*nt + 2*h; D = DG[ks & 1] + 2*h; o = DT[nt % 3] + 4*h
        e(f'  v_mfma_f32_4x4x4_16b_bf16 v[{o}:{o+3}], v[{D}:{D+1}], a[{R}:{R+1}], 0')
    posted = set()
    def post(ks, nt):
        f, b = bloc(ks); o = DT[nt % 3]
        if f == 'v': it = [f'  v_cvt_pk_bf16_f32 v{b+4*nt+q}, v{o+2*q}, v{o+2*q+1}' for q in range(4)]
        else: it = ([f'  v_cvt_pk_bf16_f32 v{o+2*q}, v{o+2*q}, v{o+2*q+1}' for q in range(4)] +
                    [f'  v_accvgpr_write_b32 a{b+4*nt+q}, v{o+2*q}' for q in range(4)])
        return it + [lambda: posted.add((ks, nt))]
    X0 = (sig(0) & 1) * TILE
    def pxrd(k):
        xrd(XF[k % 3], X0, 0, k, ('PX', k)); xrd(XF[k % 3] + 4, X0, 1, k, ('PX', k))
    def fmf(i):
        k, j = i // 12, i % 12
        assert (k, j // 2) in posted, (k, j)
        if j == 0: g.wait(('px', k), lg=('PX', k))
        mfma(j & 1, j // 2, k, XF[k % 3] + 4*(j & 1))
    cum = {}
    for r in range(13):
        if r < RF: cum[r] = 0
        else: cum[r] = min(12*r, (144*(r - RF + 1)) // (13 - RF)) if r < 12 else 144
    for grp in vgroups(V0[12:]): run(grp)
    run(titems(0))
    for grp in vgroups(vtake(-1, CAP[1])): run(grp)
    run(mitems(0))
    barr = -1
    for r in range(13):
        F = list(range(cum[r - 1] if r else 0, cum[r]))
        TI = titems(r + 1) if r + 1 < 12 else []
        MI = mitems(r + 1) if r + 1 < 12 else []
        VL = vtake(r, CAP[2 + r]); V = vgroups(VL)
        need = max([ea for (it, j, ea) in VL if it[0] == 'x'] + [-1])
        b = need > barr
        if r == RF:
            g.wait('x0', vm=('L', 0, 5)); b = True
        if r == I('bx', 99): b = True
        if b:
            if r < 12: g.wait(('trb', r), lg=('TR', r, 5))
            e('  s_barrier'); barr = min(r, 11)
        if r == RF: pxrd(0); pxrd(1)
        fss = [F[(nt*len(F))//6:((nt+1)*len(F))//6] for nt in range(6)]
        if r == RF and len(F) > 6: fss[1] = fss[0] + fss[1]; fss[0] = []
        vs = [V[(nt*len(V))//6:((nt+1)*len(V))//6] for nt in range(6)]
        trw = [False]
        for nt in range(6):
            fs = fss[nt]
            P = post(r, nt - 2) if (nt >= 2 and r < 12) else (post(r - 1, nt + 4) if (nt < 2 and r >= 1) else [])
            if len(P) == 9: P = [P[0], P[1], P[2], P[4], P[3], P[5], P[6], P[7], P[8]]
            if nt == 4: P = P + MI[:3]
            if nt == 5: P = MI[3:] + P
            mem = []
            if TI:
                if nt == 0: mem.append(([TI[0]], TI[2], []))
                else: mem.append(([], TI[2 + 2*nt], []))
                mem.append(([], TI[3 + 2*nt], []))
                if nt == 1: mem.insert(1, ([], TI[1], []))
            for m in fs:
                k, j = m // 12, m % 12
                if j in (4, 6) and k + 2 < 12:
                    mem.insert(1, ([], lambda k=k, h=(j - 4) // 2: xrd(XF[(k + 2) % 3] + 4*h, X0, h, k + 2, ('PX', k + 2)), []))
            for (vi, grp) in zip(VL[(nt*len(V))//6:], vs[nt]):
                li = [i for i, x in enumerate(grp) if callable(x)][0]
                pre = [x for x in grp[:li] if x != '  s_nop 0']
                if vi[0][0] == 'b' and vi[2] == r and not trw[0]:
                    pre = pre + [lambda: g.wait(('trd', r), lg=('TR', r, 5))]; trw[0] = True
                mem.append((pre, grp[li], grp[li + 1:]))
            if r < 12:
                g.wait(('tr', r, nt), lg=('TR', r, nt))
                if nt == 0 and g.L[-1].startswith('  v_and'): e('  s_nop 0')
                smf(r, nt, 0); smf(r, nt, 1)
                run(P[:2]); P = P[2:]
            n = max(1, len(fs))
            for i in range(n):
                my = mem[(i*len(mem))//n:((i+1)*len(mem))//n]
                m0set = False
                for q, (pre, _, _) in enumerate(my):
                    if any(isinstance(x, str) and ' m0,' in x for x in pre):
                        if m0set or any(isinstance(z, str) for (_, _, pp) in my[:q] for z in pp) or any(True for (pp, mm, _) in my[:q] if getattr(mm, 'dma', False)): continue
                        m0set = True
                    run(pre); my[q] = ([], my[q][1], my[q][2])
                if fs: fmf(fs[i])
                elif m0set: e('  s_nop 0')
                for (pre, mi, po) in my:
                    if pre:
                        run(pre)
                        if len(pre) == 1: e('  s_nop 0')
                    mi(); run(po)
                npv = len(P) if i == n - 1 else max(1, len(P) // (2*(n - i)))
                run(P[:npv]); P = P[npv:]
        if r in (0, 3, 7, 11): pstamp()

    def cvt_i(mt, d): a = ACC[mt]; return f'  v_cvt_pk_bf16_f32 v{a+d}, v{a+2*d}, v{a+2*d+1}'
    def ow(mt, i, par, tag):
        a = ACC[mt] + 4*i
        g.lgop(f'  ds_write_b128 v{vW[i]}, v[{a}:{a+3}] offset:{L_O + par*TILE + mt*HALF}', tag)
    def ord_(t, u):
        g.lgop(f'  ds_read_b128 a[{OB[u]}:{OB[u]+3}], v{vX[u % 3]} offset:{L_O + ((t - 1) & 1)*TILE + (u // 3)*HALF}', ('O', t, u))
    MIX = opts.get('mix', '')
    def stfl(u): return ' nt' if str(u) in MIX else NT_ST
    S0 = opts.get('s0')
    def ost(t, u, key):
        g.wait((key, 'o', u), lg=('O', t, u))
        fl = stfl(u)
        if S0 is not None and isinstance(key, tuple) and key[1] == 0: fl = '' if S0 == 'none' else ' ' + S0
        g.vmop(f'  buffer_store_dwordx4 a[{OB[u]}:{OB[u]+3}], v{vG[u % 3]}, s[{sO}:{sO+3}], s{sSt0 if u < 3 else sSt1} offen{fl}')
    def prd(t, ps, h):
        mt, kp = ps // 6, ps % 6
        xrd(XF[ps % 3] + 4*h, (sig(t) & 1)*TILE, mt, 2*kp + h, ('X', t, ps))

    if barr < 10: e('  s_barrier'); barr = 11
    if sig(1) % 2 == 0:
        for r in vR: e(f'  v_xor_b32 v{r}, 0x14000, v{r}')
    e('  s_mov_b64 vcc, -1')
    e('  s_nop 4')
    for i in range(3):
        for k in range(4): e(cvt_i(0, 4*i + k))
        ow(0, i, 0, ('OW', 0))
    VL = vtake(barr, 99)
    assert not VQ
    for grp in vgroups(VL): run(grp)
    g.wait('pre', vm=('L', 1, 5), lg=('OW', 0))
    e('  s_barrier')
    SCHS = {0: schedule(opts, 0), 1: schedule(opts, 1)}
    OOL = []
    def filler(name, t, par, dyn):
        kind = name[0]; kp = (par, dyn)
        if kind == 'rd': return lambda: prd(t + (name[1] >= 12), name[1] % 12, name[2])
        if kind == 'wx': return lambda: g.wait((kp, 'x', name[1]), lg=('X', t + (name[1] >= 12), name[1] % 12))
        ep = t + name[-1]
        if kind == 'or': return lambda: ord_(ep, name[1])
        if kind == 'os': return lambda: ost(ep, name[1], kp)
        if kind == 'm0': return lambda: e(dma_m0(ep + LA, name[1], sMb))
        if kind == 'dl':
            def f():
                if par == 'pre': e('  s_nop 0')
                if dyn:
                    lab[0] += 1
                    e(f'  s_cbranch_vccz L_sk{lab[0]}')
                if WIN and dyn: e(f'  s_waitcnt vmcnt({WIN})')
                dma_ld(ep + LA, name[1])
                if dyn: e(f'L_sk{lab[0]}:')
            return f
        if kind == 'cv': return lambda: e(cvt_i(name[1], name[2]))
        if kind == 'ow': return lambda: ow(name[1], name[2], ep & 1, ('OW', ep))
        if kind == 'mb':
            return lambda: (e(f'  s_xor_b32 s{sMb}, s{sMb}, 0x14000') if sig(ep + LA) % 2 == 0 else None)
        if kind == 'xr':
            return lambda: (e(f'  v_xor_b32 v{vR[name[1]]}, 0x14000, v{vR[name[1]]}') if sig(t + 1) % 2 == 0 else None)
        if dyn:
            if kind == 'sa':
                if name[1] == 0: return lambda: run([f'  s_add_u32 s{sSt1}, s{sSt0}, {HALF}', f'  s_mov_b32 s{sSt0}, s58'])
                return lambda: run(['  s_mov_b32 s58, s59', '  s_mov_b32 s59, s60'][:LA - 1])
            if kind == 'sb': return lambda: e(f'  s_mov_b32 s{57 + LA}, s{sLd}')
            if kind == 'hk':
                k = name[1]
                if k == 0:
                    def f():
                        g.wait((kp, 'hk'), lg=g.lg[-1] if g.mode == 'collect' else 0)
                        assert g.L[-1] == '  s_waitcnt lgkmcnt(0)'
                    return f
                if k == 1: return lambda: run([f'  s_mul_i32 s56, s54, {4*TILE}', '  s_add_u32 s56, s56, s57'])
                if k == 2: return lambda: run([f'  s_cmp_lt_u32 s54, {NPOOL}', f'  s_cselect_b32 s56, s56, s{sX+2}'])
                if k == 6: return lambda: run([f'  s_add_u32 s62, s62, s{sStr}', '  s_sub_u32 s61, s61, 1'])
                if k == 7: return lambda: run(['  s_cmp_ge_i32 s61, 0', '  s_cselect_b32 s56, s62, s56'])
                if k == 8: return lambda: run(['  s_cmp_eq_u32 s61, 0', '  s_cselect_b32 s55, s66, s55', f'  s_cselect_b32 s65, {NPOOL}, s65'])
                if k == 3: return lambda: e(f'  v_mov_b32 v{vZ}, s56')
                if k == 4: return lambda: g.lgop(f'  ds_write_b32 v{vMW}, v{vZ} offset:{4*(ep & 1)}', ('MB', ep))
                if k == 5: return claim
            if kind == 'dm': return lambda: g.lgop(f'  ds_read_b32 v{vZ}, v{vMB} offset:64', 'dummy')
            if kind == 'tr': return lambda: g.lgop(f'  ds_read_b32 v{vTk}, v{vMB} offset:{4*((ep - 1) & 1)}', ('TK', ep))
            if kind == 'tw': return lambda: (g.wait((kp, 'tk'), lg=('TK', ep)), e(f'  v_readfirstlane_b32 s{sLd}, v{vTk}'))
            if kind == 'vc':
                if name[1] == 0: return lambda: run([f'  s_cmp_lt_u32 s{sLd}, s{sX+2}', '  s_cselect_b64 vcc, -1, 0'])
                return lambda: run([f'  s_cselect_b32 s{sCnt}, {LA + 2}, s{sCnt}', f'  s_add_u32 s{sLd1}, s{sLd}, {HALF}'])
            if kind == 'dc': return lambda: run([f'  s_sub_u32 s{sCnt}, s{sCnt}, 1', f'  s_cmp_eq_u32 s{sCnt}, 0'])
            if kind == 'bar':
                def f():
                    lab[0] += 1
                    dmy = any(n[0] == 'dm' for gp in SCHS[1] for n in gp)
                    if g.mode == 'collect' and dmy: assert g.lg[-1] == 'dummy'
                    g.wait((kp, 'bar'), vm=('L', t + 1, 5), lg=g.lg[-2 if dmy else -1] if g.mode == 'collect' else 0)
                    assert 'lgkmcnt' in g.L[-1]
                    if not unroll:
                        e(f'  s_cbranch_vccz L_ow{lab[0]}')
                        e(f'L_ob{lab[0]}:')
                        OOL.append(lab[0])
                    e('  s_barrier')
                return f
        else:
            if kind == 'la': return lambda: e(f'  s_add_u32 s{[sLd, sLd1][name[1]]}, s{[sLd, sLd1][name[1]]}, s{sStr}')
            if kind == 'sa':
                if name[1] == 0: return lambda: e(f'  s_add_u32 s{sSt1}, s{sSt0}, {HALF}')
                return lambda: e(f'  s_add_u32 s{sSt0}, s{sSt0}, s{sStr}')
            if kind == 'dc': return lambda: (run([f'  s_sub_u32 s{sCnt}, s{sCnt}, 1', f'  s_cmp_eq_u32 s{sCnt}, 0']) if par == 0 else None)
            if kind == 'bar':
                return lambda: (g.wait((kp, 'bar'), vm=('L', t + 1, 5), lg=g.lg[-1] if g.mode == 'collect' else 0), e('  s_barrier'))
        raise KeyError(name)
    for gp in range(120, 144):
        for name in SCHS[1][gp]:
            if name[0] in ('xr', 'bar', 'dc', 'la', 'tr', 'tw', 'vc', 'sb', 'hk') or (name[0] == 'wx' and name[1] < 12): continue
            filler(name, 0, 'pre', 0)()
    stamp()

    def iteration(t, dyn):
        SCH = SCHS[dyn]
        for ps in range(12):
            mt, kq = ps // 6, ps % 6
            for nt in range(6):
                for h in range(2):
                    mfma(mt, nt, 2*kq + h, XF[ps % 3] + 4*h)
                    if ST and ps == 11 and nt == 4 and h == 1: stamp()
                    for name in SCH[12*ps + 2*nt + h]: filler(name, t, t & 1, dyn)()

    SCH = SCHS[1]
    done_or = [n[1] for gp in range(120, 144) for n in SCH[gp] if n[0] == 'or']
    done_os = [n[1] for gp in range(120, 144) for n in SCH[gp] if n[0] == 'os']
    vm_of = lambda S: [n for gp in range(120, 144) for n in S[gp] if n[0] in ('or', 'os', 'dl')]
    assert sorted(vm_of(SCHS[0])) == sorted(vm_of(SCHS[1]))
    def tail(t):
        for u in range(6):
            if u not in done_or: ord_(t, u)
        rest = [u for u in range(6) if u not in done_os]
        e('  s_nop 1')
        for i in range(3):
            for k in range(4): e(cvt_i(1, 4*i + k))
            ow(1, i, t & 1, ('OW', t))
        for u in rest[:2]: ost(t, u, 'T')
        e('  s_waitcnt lgkmcnt(0)')
        e('  s_barrier')
        for u in range(3):
            e(f'  ds_read_b128 a[{XF[0]+4*u}:{XF[0]+4*u+3}], v{vX[u]} offset:{L_O + (t & 1)*TILE + HALF}')
        for u in rest[2:]:
            e(f'  buffer_store_dwordx4 a[{OB[u]}:{OB[u]+3}], v{vG[u % 3]}, s[{sO}:{sO+3}], s{sSt0 if u < 3 else sSt1} offen{stfl(u)}')
        e(f'  s_add_u32 s{sSt1}, s{sSt0}, {HALF}')
        for u in range(3):
            e(f'  s_waitcnt lgkmcnt({2-u})')
            e(f'  buffer_store_dwordx4 a[{XF[0]+4*u}:{XF[0]+4*u+3}], v{vG[u]}, s[{sO}:{sO+3}], s{sSt1} offen{stfl(u+3)}')
        e('  s_branch L_fin' if ST else '  s_endpgm')
    if unroll:
        for t in range(1, NTILE + 1): iteration(t, 1)
        tail(NTILE + 1)
    else:
        e('.p2align 6')
        e('L_loop0:')
        iteration(1, 1)
        e('  s_cbranch_scc1 L_tail0')
        e('L_mid0:')
        iteration(0, 1)
        e('  s_cbranch_scc0 L_loop0')
        e('L_tail1:')
        tail(1)
        e('L_tail0:')
        tail(0)
    if ST:
        e('L_fin:')
        e('  s_waitcnt lgkmcnt(0)'); stamp()
        e(f'  v_writelane_b32 v{VR_}, s94, 42')
        e('  s_mov_b32 s94, 40')
        e('  s_waitcnt vmcnt(0) lgkmcnt(0)'); stamp(); e('  s_waitcnt lgkmcnt(0)'); stamp()
        for s in ('s_load_dwordx2 s[86:87], s[0:1], 40', 's_waitcnt lgkmcnt(0)', 's_getreg_b32 s92, hwreg(HW_REG_XCC_ID)',
                  f'v_writelane_b32 v{VR_}, s92, 62',
                  's_mov_b32 s88, s86', 's_and_b32 s89, s87, 0xffff', 's_mov_b32 s90, 1048576', 's_mov_b32 s91, 0x00020000',
                  's_lshl_b32 s92, s2, 11', f's_lshl_b32 s93, s{sW}, 9', 's_add_u32 s92, s92, s93',
                  'v_mbcnt_lo_u32_b32 v1, -1, 0', 'v_mbcnt_hi_u32_b32 v1, -1, v1', 'v_lshlrev_b32 v1, 2, v1',
                  f'buffer_store_dword v{VR_}, v1, s[88:91], s92 offen', f'buffer_store_dword v{VT_}, v1, s[88:91], s92 offen offset:256', 's_waitcnt vmcnt(0)'):
            e('  ' + s)
        e('  s_endpgm')
    seq = [n[0] for gp in list(range(120, 144)) + list(range(120)) for n in SCH[gp] if n[0] in ('dl', 'os')]
    after = len(seq) - 1 - max(i for i, k in enumerate(seq) if k == 'dl')
    for l in OOL:
        e(f'L_ow{l}:')
        e(f'  s_cmp_eq_u32 s{sCnt}, 1')
        e(f'  s_cbranch_scc1 L_ob{l}')
        if LA == 3:
            e(f'  s_waitcnt vmcnt({after + 18})')
            e(f'  s_cmp_eq_u32 s{sCnt}, 3')
            e(f'  s_cbranch_scc1 L_ob{l}')
            e(f'  s_waitcnt vmcnt({after + 12})')
        else:
            e(f'  s_waitcnt vmcnt({after + 6})')
        e(f'  s_branch L_ob{l}')
    e('L_done:')
    e('  s_endpgm')
    e('.section .rodata,"a"')
    e('.p2align 6')
    e(f'.amdhsa_kernel {NAME}')
    e('  .amdhsa_next_free_vgpr 512')
    e('  .amdhsa_next_free_sgpr 100')
    e('  .amdhsa_accum_offset 256')
    e('  .amdhsa_group_segment_fixed_size 0')
    e('  .amdhsa_kernarg_size 48')
    e('  .amdhsa_user_sgpr_count 2')
    e('  .amdhsa_user_sgpr_kernarg_segment_ptr 1')
    e('  .amdhsa_system_sgpr_workgroup_id_x 1')
    e('  .amdhsa_float_denorm_mode_32 3')
    e('.end_amdhsa_kernel')

def schedule(opts, dyn):
    S = [[] for _ in range(144)]
    def put(ps, gp, *names): S[12*ps + gp] += list(names)
    for ps in range(12):
        put(ps, 0, ('rd', ps + 2, 0)); put(ps, 1, ('rd', ps + 2, 1))
        put(ps, 11, ('wx', ps + 1))
    S[12*9 + 11] = [('bar', 0)]
    ep = lambda ps: 1 if ps >= 10 else 0
    put(11, 10, ('dc', 0))
    sps = [int(z) for z in opts.get('sps', '10,0,2,4,6,8').split(',')]; dps = [11, 1, 3, 5, 7, 9]
    for u in range(6):
        ps = dps[u]; put(ps, 7, ('m0', u, ep(ps))); put(ps, 8, ('dl', u, ep(ps)))
        ps = sps[u]; put(ps, 10 if ps == 10 else 8 + min(1, sps[:u].count(ps)), ('os', u, ep(ps)))
    put(10, 2, ('or', 0, 1)); put(10, 4, ('or', 1, 1)); put(10, 5, ('or', 2, 1))
    for i, u in enumerate(range(3, 6)): put(11, 2 + i, ('or', u, 1))
    put(9, 3, ('xr', 0)); put(9, 4, ('xr', 1)); put(9, 5, ('xr', 2)); put(9, 6, ('xr', 3))
    put(11, 6, ('mb', 1))
    put(9, 9, ('sa', 0, 0)); put(9, 10, ('sa', 1, 0))
    if dyn:
        HP = int(opts.get('hp', 4)); HC = int(opts.get('hc', HP))
        put(10, 3, ('tr', 1)); put(10, 6, ('sb', 1)); put(10, 9, ('tw', 1)); put(11, 0, ('vc', 0, 1)); put(11, 1, ('vc', 1, 1))
        S[12*(HP - 1) + 11] = [('hk', 0, 0)]
        put(4, 3, ('hk', 6, 0)); put(4, 4, ('hk', 8, 0))
        for i, k in enumerate((1, 2, 7, 3, 4)): put(HP, 2 + i, ('hk', k, 0))
        assert HP > 4
        if HC == HP:
            put(HP, 9, ('hk', 5, 0)); put(9, 2, ('dm', 0))
        else: put(HC, 7 if HC == 10 else 5, ('hk', 5, ep(HC)))
    else:
        put(4, 3, ('la', 0, 0)); put(10, 6, ('la', 1, 1))
    for i in range(3):
        ps = 1 + i
        for k in range(4): put(ps, 2 + k, ('cv', 1, 4*i + k, 0))
        put(ps, 10 if ps % 2 else 6, ('ow', 1, i, 0))
        ps = 6 + i
        for k in range(4): put(ps, 2 + k, ('cv', 0, 4*i + k, 0))
        put(ps, 10 if ps % 2 else 6, ('ow', 0, i, 0))
    return S

if __name__ == '__main__':
    out = sys.argv[1]
    opts = dict(a.split('=', 1) for a in sys.argv[2:])
    for k in ('nt_ld', 'nt_st'):
        if k in opts: opts[k] = (' ' + opts[k].replace('+', ' ')) if opts[k] != 'none' else ''
    open(out, 'w').write(gen(opts))
```

```python
import sys, re
from gen20 import regs_of, hazard_check, HDR, NAME
from gen21 import G

def gen(opts):
    g = G()
    build(g, opts, True)
    g.reset('check')
    build(g, opts, True)
    hazard_check(g.L)
    g.reset('emit')
    build(g, opts, False)
    return '\n'.join(g.L) + '\n'

def build(g, opts, unroll):
    e = g.e
    I = lambda k, d: int(opts.get(k, d))
    NT_LD = opts.get('nt_ld', ' nt'); NT_ST = opts.get('nt_st', ' sc1')
    ST = I('st', 0); CPF = I('cpf', 1); ASYM = 0; DYN = 1; NS = I('ns', 4); RF = I('rf', 4); PM = I('pm', 0); DUM = I('dum', 0)
    assert not (ASYM and DYN)
    TILE = 24576; HALF = 12288; STRIDE = 256 * TILE; XB = 113246208
    NTILE = 19 if ASYM else 18
    SST = I('sst', 15); T1 = 0; LA = I('la', 3); WIN = I('win', 0); OOB = I('oob', 1); GSK = I('gsk', 0)
    NPOOL = (4608 - SST*256) // 4
    NH = I('nh', 32); NF = NPOOL - NH // 2; NV_ = NF + NH
    assert NH <= 64 and NH % 2 == 0 and not I('bias', 0)
    L_O = 0; L_X = 2 * TILE; L_D = L_X + 4 * TILE; L_TOT = L_D + 4096
    vX = [1, 2, 3]; vG = [4, 5, 6]; vR = [7, 8, 9, 10]; vW = [11, 12, 13]; vBL = [14, 15, 16]; vTr = [17, 104]; vD = 18; vM = [19, 20]
    VR_, VT_ = 21, 22; vZ = 23
    ACC = [24, 48]; DT = [72, 80, 88]; DG = [96, 100]; vMB = 105; vMW = 106; vTk = 107; vP = 108; BV = 112; NVU = 6
    T = list(range(72, 96))
    RAWF = [144, 168]; XF = [192, 200, 208]; OB = [216 + 4*i for i in range(6)]
    sX, sO, sP, sD = 4, 8, 12, 16
    sW, sLd, sSt0, sSt1, sCnt, sM, sBs, sBo, sLd1, sMb, sDl = 20, 21, 22, 23, 32, 33, 34, 36, 37, 42, 43
    sStr, sAlt = 44, 45
    VFIRST = I('vfirst', 0)
    def bloc(ks):
        if VFIRST: return ('v', BV + 24*ks) if ks < NVU else ('a', 24*(ks - NVU))
        return ('a', 24*ks) if ks < 12 - NVU else ('v', BV + 24*(ks - (12 - NVU)))
    def breg(ks, nt):
        f, b = bloc(ks); return f'{f}[{b+4*nt}:{b+4*nt+3}]'
    def run(items):
        for it in items:
            if callable(it): it()
            else: e(it)
    def stamp(first=False):
        if not ST: return
        if not first:
            e('  s_mov_b32 m0, s94'); e(f'  v_writelane_b32 v{VR_}, s90, m0'); e(f'  v_writelane_b32 v{VT_}, s92, m0'); e('  s_add_u32 s94, s94, 1')
        e('  s_memrealtime s[90:91]'); e('  s_memtime s[92:93]')
    def pstamp():
        if ST < 2: return
        e('  s_waitcnt lgkmcnt(0)'); stamp()
    sig = lambda t: t + NS - 2
    slot = lambda ks: (ks + (14 % NS if NS == 4 else (2 if NS == 3 else 0))) % NS
    assert slot(10) == 0 and slot(11) == 1
    def ring_free_unit(t):
        s = (sig(t) & 3) + 2
        ks = [k for k in range(12) if slot(k) == s]
        return ks[-1] if ks else -1

    e(HDR.rstrip('\n'))
    e(f'; @launch grid=(256,1,1) block=(256,1,1) lds={L_TOT}')
    e('.amdgcn_target "amdgcn-amd-amdhsa--gfx950"')
    e('.text')
    e(f'.globl {NAME}')
    e('.p2align 8')
    e(f'.type {NAME},@function')
    e(f'{NAME}:')
    e('  s_cmp_ge_u32 s2, 256')
    e('  s_cbranch_scc1 L_done')
    e('  s_load_dwordx4 s[28:31], s[0:1], 16')
    e('  s_load_dwordx4 s[24:27], s[0:1], 0')
    if DYN: e('  s_load_dwordx2 s[52:53], s[0:1], 32')
    if ST:
        e('  s_mov_b32 s94, 0'); stamp(True)
    lane, lo4, hi2 = T[2], T[3], T[4]
    if CPF:
        e('  s_getpc_b64 s[40:41]')
        e('L_pc:')
        e(f'  v_lshlrev_b32 v{T[0]}, 7, v0')
        e(f'  v_min_u32 v{T[0]}, L_done-L_pc, v{T[0]}')
        e(f'  v_mov_b32 v{T[1]}, s41')
        e(f'  v_add_co_u32 v{T[0]}, vcc, s40, v{T[0]}')
        e(f'  v_lshrrev_b32 v{T[5]}, 6, v0')
        e(f'  v_and_b32 v{lane}, 63, v0')
        e(f'  v_addc_co_u32 v{T[1]}, vcc, 0, v{T[1]}, vcc')
        g.vmop(f'  global_load_dword v{vZ}, v[{T[0]}:{T[1]}], off')
    else:
        e(f'  v_lshrrev_b32 v{T[5]}, 6, v0')
        e(f'  v_and_b32 v{lane}, 63, v0')
    e(f'  v_readfirstlane_b32 s{sW}, v{T[5]}')
    e(f'  v_and_b32 v{lo4}, 15, v{lane}')
    e(f'  v_lshlrev_b32 v{T[6]}, 4, v{lane}')
    e(f'  v_lshlrev_b32 v{T[7]}, 4, v{lo4}')
    e('  s_lshr_b32 s47, s2, 3')
    e('  s_mul_i32 s39, s47, 9216')
    e(f'  s_mul_i32 s38, s{sW}, 2304')
    e('  s_add_u32 s39, s39, s38')
    e(f'  s_mul_i32 s38, s{sW}, 192')
    for i in range(3):
        src = lane
        if i: e(f'  v_add_u32 v{T[8]}, {64*i}, v{lane}'); src = T[8]
        run([f'  v_mul_u32_u24 v{T[9]}, 0xaaab, v{src}', f'  v_lshrrev_b32 v{T[9]}, 19, v{T[9]}',
             f'  v_mul_u32_u24 v{T[9]}, 576, v{T[9]}',
             f'  v_add3_u32 v{vBL[i]}, v{T[9]}, v{T[6]}, s38'])
    e(f'  s_lshl_b32 s{sM}, s{sW}, 10')
    e(f'  s_mul_i32 s{sBs}, s{sW}, 6144')
    e(f'  s_mov_b32 s{sBo}, 0')
    e(f'  s_mov_b32 s{sP+2}, 294912')
    e(f'  s_mov_b32 s{sP+3}, 0x00020000')
    e(f'  s_mov_b32 s{sD+2}, 768')
    e(f'  s_mov_b32 s{sD+3}, 0x00020000')
    e(f'  s_add_u32 m0, s{sM}, {L_D}')
    e('  s_waitcnt lgkmcnt(0)')
    def srd(sd, lo, nbytes=None):
        e(f'  s_mov_b32 s{sd}, s{lo}')
        e(f'  s_and_b32 s{sd+1}, s{lo+1}, 0xffff')
        if nbytes:
            e(f'  s_mov_b32 s{sd+2}, {nbytes}')
            e(f'  s_mov_b32 s{sd+3}, 0x00020000')
    srd(sP, 28)
    if I('warm', 1):
        g.vmop(f'  buffer_load_dwordx4 a[{OB[0]}:{OB[0]+3}], v{T[6]}, s[{sP}:{sP+3}], s39 offen')
        g.vmop(f'  buffer_load_dwordx4 a[{OB[1]}:{OB[1]+3}], v{T[6]}, s[{sP}:{sP+3}], s39 offen offset:1024')
        g.vmop(f'  buffer_load_dwordx4 a[{OB[2]}:{OB[2]+3}], v{T[7]}, s[{sP}:{sP+3}], s39 offen offset:2048')
    srd(sD, 26)
    g.vmop(f'  buffer_load_dwordx4 v{T[6]}, s[{sD}:{sD+3}], 0 offen lds', 'dw')
    pstamp()
    def bitems(ks):
        it = []
        for h in range(2):
            pre = [f'  s_add_u32 m0, s{sBs}, {slot(ks)*TILE + h*3072}', f'  s_add_u32 s{sBo}, s{sBo}, {HALF}' if (ks or h) else '  s_nop 0']
            for i in range(3):
                ld = lambda i=i, h=h: g.vmop(f'  buffer_load_dwordx4 v{vBL[i]}, s[{sP}:{sP+3}], s{sBo} offen offset:{i*1024} lds', ('B', ks, 3*h + i))
                ld.dma = True
                it.append((pre if i == 0 else []) + [ld])
        return it
    def dma_m0(t, u, mreg=None):
        if mreg is None: return f'  s_add_u32 m0, s{sM}, {L_X + (sig(t) & 3)*TILE + u*4096}'
        return f'  s_add_u32 m0, s{mreg}, {(sig(t) & 1)*TILE + u*4096}'
    def dma_ld(t, u):
        g.vmop(f'  buffer_load_dwordx4 v{vX[u % 3]}, s[{sX}:{sX+3}], s{sLd if u < 3 else sLd1} offen{NT_LD} lds', ('L', t, u))
    def xitems(t):
        it = []
        for u in range(6):
            ld = lambda u=u: dma_ld(t, u)
            ld.dma = True
            it.append([dma_m0(t, u), '  s_nop 0', ld])
        it[3][1] = f'  s_add_u32 s{sLd}, s{sLd}, {STRIDE}'
        it[5].append(f'  s_add_u32 s{sLd1}, s{sLd1}, {STRIDE}')
        return it
    PLAN = opts.get('plan', 'b0.b1.b2.b3.x0.b4.b5.b6.b7.b8.b9.b10.b11.x1.x2.x3').split('.')
    CAP = [int(z) for z in opts.get('cap', '12,6,12,12,6,6,6,6,6,6,6,6,6,6,6').split(',')]
    VQ = []
    for it in PLAN:
        k = int(it[1:])
        if it[0] == 'p':
            VQ.append((it, 0, -9)); continue
        early = (k - NS if k >= NS else -9) if it[0] == 'b' else (ring_free_unit(k) if ring_free_unit(k) >= 0 else -9)
        VQ += [(it, j, early) for j in range(6)]
    def vtake(r, n):
        out = []
        while VQ and VQ[0][2] <= r and (len(out) < n or (VQ[0][0][0] == 'b' and VQ[0][1] % 3)):
            out.append(VQ.pop(0))
        return out
    def vgroups(lst):
        pitems = lambda t: [[f'  s_add_u32 s50, s{sSt0}, {t*STRIDE}', lambda: g.vmop(f'  buffer_load_dword v{vZ}, v{vP}, s[{sX}:{sX+3}], s50 offen')]]
        return [{'b': bitems, 'x': xitems, 'p': pitems}[it[0]](int(it[1:]))[j] for (it, j, _) in lst]
    def xsetup():
        e('  s_and_b32 s38, s2, 7')
        e('  s_lshl_b32 s38, s38, 5')
        e('  s_add_u32 s38, s38, s47')
        e(f'  s_mul_i32 s{sLd}, s38, {TILE}')
        srd(sX, 24, XB)
        for u in range(3):
            src = 0
            if u: e(f'  v_add_u32 v{T[8]}, {256*u}, v0'); src = T[8]
            e(f'  v_mul_u32_u24 v{T[9]}, 0xaaab, v{src}')
            e(f'  v_lshrrev_b32 v{T[9]}, 21, v{T[9]}')
            e(f'  v_xor_b32 v{T[8]}, v{src}, v{T[9]}')
            e(f'  v_lshlrev_b32 v{vX[u]}, 4, v{T[8]}')
        e(f'  s_add_u32 s{sLd1}, s{sLd}, {HALF}')
        e(f'  s_mov_b32 s{sSt0}, s{sLd}')
        if any(it[0] == 'p' for it in PLAN): e(f'  v_mul_u32_u24 v{vP}, 96, v0')
    V0 = vtake(-2, CAP[0])
    if V0[0][0][0] == 'x': xsetup()
    for grp in vgroups(V0[:6]): run(grp)
    if V0[0][0][0] != 'x': xsetup()
    e(f'  v_lshrrev_b32 v{hi2}, 4, v{lane}')
    e(f'  v_lshlrev_b32 v{vD}, 4, v{hi2}')
    e(f'  v_add_u32 v{vD}, s{sM}, v{vD}')
    e(f'  v_add_u32 v{vD}, {L_D}, v{vD}')
    e(f'  v_bfe_u32 v{T[9]}, v{lane}, 2, 2')
    e(f'  v_and_b32 v{T[10]}, 3, v{lane}')
    e(f'  v_lshl_add_u32 v{T[11]}, v{hi2}, 3, v{T[9]}')
    e(f'  v_mul_u32_u24 v{T[11]}, 192, v{T[11]}')
    e(f'  v_mul_u32_u24 v{T[12]}, 48, v{T[10]}')
    e(f'  v_add3_u32 v{vTr[0]}, v{T[11]}, v{T[12]}, s{sBs}')
    e(f'  v_add_u32 v{vTr[1]}, {2*TILE}, v{vTr[0]}')
    e(f'  v_lshlrev_b32 v{T[11]}, 4, v{T[10]}')
    e(f'  v_mov_b32 v{T[12]}, 0xffff')
    e(f'  v_cmp_lt_u32 vcc, 1, v{T[10]}')
    e(f'  v_lshlrev_b32 v{T[12]}, v{T[11]}, v{T[12]}')
    e(f'  v_mul_u32_u24 v{T[8]}, 0x300, v{lo4}')
    e(f'  v_cndmask_b32 v{vM[1]}, 0, v{T[12]}, vcc')
    e(f'  v_sub_u32 v{vM[0]}, v{T[12]}, v{vM[1]}')
    for grp in vgroups(V0[6:12]): run(grp)
    srd(sO, 30, XB)
    e(f'  v_lshlrev_b32 v{vG[0]}, 4, v0')
    for u in range(1, 3): e(f'  v_add_u32 v{vG[u]}, {4096*u}, v{vG[0]}')
    e(f'  v_xor_b32 v{T[9]}, v{hi2}, v{lo4}')
    e(f'  v_lshl_add_u32 v{vR[0]}, v{T[9]}, 4, v{T[8]}')
    pb = lambda t: L_X + ((sig(t) & 3) >> 1) * 2 * TILE
    e(f'  v_add_u32 v{vR[0]}, {pb(0)}, v{vR[0]}')
    for s in range(1, 4): e(f'  v_xor_b32 v{vR[s]}, {s*64}, v{vR[0]}')
    e(f'  s_mul_i32 s38, s{sW}, 12')
    e(f'  v_mul_u32_u24 v{T[9]}, 3, v{hi2}')
    e(f'  v_add_u32 v{T[9]}, s38, v{T[9]}')
    for i in range(3):
        e(f'  v_add_u32 v{T[10]}, {i}, v{T[9]}')
        e(f'  v_xor_b32 v{T[10]}, v{T[10]}, v{lo4}')
        e(f'  v_lshl_add_u32 v{vW[i]}, v{T[10]}, 4, v{T[8]}')
    e(f'  s_mov_b32 s{sSt1}, {XB}')
    e(f'  s_mov_b32 s{sStr}, {STRIDE}')
    e(f'  s_add_u32 s{sMb}, s{sM}, {pb(LA + 1) ^ (0x14000 if sig(LA + 1) % 2 == 0 else 0)}')
    e('  s_mov_b32 s51, 1')
    if ASYM:
        e('  s_bitcmp1_b32 s2, 0')
        e(f'  s_cselect_b32 s{sCnt}, 16, 18')
        e(f'  s_cselect_b32 s{sAlt}, s{sStr}, {32*TILE}')
    elif DYN:
        if PM:
            e('  s_bfe_u32 s38, s2, 0x20001')
            e(f'  s_mul_i32 s57, s38, {64*TILE}')
        else:
            e('  s_and_b32 s38, s47, 3')
            e(f'  s_mul_i32 s57, s38, {TILE}')
        e(f'  s_add_u32 s57, s57, {SST*STRIDE}')
        e('  s_lshl_b32 s38, s38, 6')
        e('  s_add_u32 s52, s52, s38')
        e('  s_addc_u32 s53, s53, 0')
        e(f'  s_mov_b32 s55, {NF}')
        e('  s_mov_b32 s68, 0')
        e(f'  s_cmp_eq_u32 s{sW}, 0')
        e('  s_cselect_b32 s66, s55, 0')
        e('  s_mov_b32 s55, 0')
        e('  s_mov_b32 s65, 0')
        e(f'  s_mov_b32 s61, {SST - LA - 2}')
        e(f'  s_add_u32 s62, s{sSt0}, {(LA+1)*STRIDE}')
        e('  s_mov_b32 s54, 0')
        for k in range(LA): e(f'  s_add_u32 s{58+k}, s{sSt0}, {(k+1)*STRIDE}')
        e(f'  s_mov_b32 s{sCnt}, {LA + 1}')
        e(f'  v_mov_b32 v{vMB}, {L_D}')
        e(f'  v_add_u32 v{vMW}, s{sM}, v{vMB}')
    else:
        e(f'  s_mov_b32 s{sCnt}, 17')
    lab = [0]
    def claim():
        lab[0] += 1
        e('  s_cmp_lt_u32 s54, s55')
        e('  s_cselect_b32 s54, 1, s65')
        e(f'  s_cbranch_scc0 L_cl{lab[0]}')
        e('  s_atomic_add s54, s[52:53], 0 glc')
        e(f'L_cl{lab[0]}:')
    pstamp()

    def acc(mt, nt): a = ACC[mt] + 4*nt; return f'v[{a}:{a+3}]'
    def mfma(mt, nt, ks, x):
        e(f'  v_mfma_f32_16x16x32_bf16 {acc(mt, nt)}, {breg(ks, nt)}, a[{x}:{x+3}], {"0" if ks == 0 else acc(mt, nt)}')
    def xrd(dst, slotoff, mt, ks, tag):
        g.lgop(f'  ds_read_b128 a[{dst}:{dst+3}], v{vR[ks & 3]} offset:{slotoff + mt*HALF + (ks >> 2)*256}', tag)
    def titems(ks):
        R = RAWF[ks & 1]; D = DG[ks & 1]; s = slot(ks)
        it = [lambda: g.wait(('b', ks), vm=('B', ks, 5))]
        it.append(lambda: g.lgop(f'  ds_read_b128 v[{D}:{D+3}], v{vD} offset:{64*ks}', ('DW', ks)))
        for nt in range(6):
            for hh in range(2):
                it.append(lambda nt=nt, hh=hh: g.lgop(f'  ds_read_b64_tr_b16 a[{R+4*nt+2*hh}:{R+4*nt+2*hh+1}], v{vTr[s >> 1]} offset:{(s & 1)*TILE + hh*768 + nt*8}', ('TR', ks, nt)))
        return it
    def mitems(ks):
        D = DG[ks & 1]
        return [lambda: g.wait(('dw', ks), lg=('DW', ks))] + [f'  v_and_b32 v{D+q}, v{vM[q & 1]}, v{D+q}' for q in range(4)]
    def smf(ks, nt, h):
        R = RAWF[ks & 1] + 4*nt + 2*h; D = DG[ks & 1] + 2*h; o = DT[nt % 3] + 4*h
        e(f'  v_mfma_f32_4x4x4_16b_bf16 v[{o}:{o+3}], v[{D}:{D+1}], a[{R}:{R+1}], 0')
    posted = set()
    def post(ks, nt):
        f, b = bloc(ks); o = DT[nt % 3]
        if f == 'v': it = [f'  v_cvt_pk_bf16_f32 v{b+4*nt+q}, v{o+2*q}, v{o+2*q+1}' for q in range(4)]
        else: it = ([f'  v_cvt_pk_bf16_f32 v{o+2*q}, v{o+2*q}, v{o+2*q+1}' for q in range(4)] +
                    [f'  v_accvgpr_write_b32 a{b+4*nt+q}, v{o+2*q}' for q in range(4)])
        return it + [lambda: posted.add((ks, nt))]
    X0 = (sig(0) & 1) * TILE
    def pxrd(k):
        xrd(XF[k % 3], X0, 0, k, ('PX', k)); xrd(XF[k % 3] + 4, X0, 1, k, ('PX', k))
    def fmf(i):
        k, j = i // 12, i % 12
        assert (k, j // 2) in posted, (k, j)
        if j == 0: g.wait(('px', k), lg=('PX', k))
        mfma(j & 1, j // 2, k, XF[k % 3] + 4*(j & 1))
    cum = {}
    for r in range(13):
        if r < RF: cum[r] = 0
        else: cum[r] = min(12*r, (144*(r - RF + 1)) // (13 - RF)) if r < 12 else 144
    for grp in vgroups(V0[12:]): run(grp)
    run(titems(0))
    for grp in vgroups(vtake(-1, CAP[1])): run(grp)
    run(mitems(0))
    barr = -1
    for r in range(13):
        F = list(range(cum[r - 1] if r else 0, cum[r]))
        TI = titems(r + 1) if r + 1 < 12 else []
        MI = mitems(r + 1) if r + 1 < 12 else []
        VL = vtake(r, CAP[2 + r]); V = vgroups(VL)
        need = max([ea for (it, j, ea) in VL if it[0] == 'x'] + [-1])
        b = need > barr
        if r == RF:
            g.wait('x0', vm=('L', 0, 5)); b = True
        if r == I('bx', 99): b = True
        if b:
            if r < 12: g.wait(('trb', r), lg=('TR', r, 5))
            e('  s_barrier'); barr = min(r, 11)
        if r == RF: pxrd(0); pxrd(1)
        fss = [F[(nt*len(F))//6:((nt+1)*len(F))//6] for nt in range(6)]
        if r == RF and len(F) > 6: fss[1] = fss[0] + fss[1]; fss[0] = []
        vs = [V[(nt*len(V))//6:((nt+1)*len(V))//6] for nt in range(6)]
        trw = [False]
        for nt in range(6):
            fs = fss[nt]
            P = post(r, nt - 2) if (nt >= 2 and r < 12) else (post(r - 1, nt + 4) if (nt < 2 and r >= 1) else [])
            if len(P) == 9: P = [P[0], P[1], P[2], P[4], P[3], P[5], P[6], P[7], P[8]]
            if nt == 4: P = P + MI[:3]
            if nt == 5: P = MI[3:] + P
            mem = []
            if TI:
                if nt == 0: mem.append(([TI[0]], TI[2], []))
                else: mem.append(([], TI[2 + 2*nt], []))
                mem.append(([], TI[3 + 2*nt], []))
                if nt == 1: mem.insert(1, ([], TI[1], []))
            for m in fs:
                k, j = m // 12, m % 12
                if j in (4, 6) and k + 2 < 12:
                    mem.insert(1, ([], lambda k=k, h=(j - 4) // 2: xrd(XF[(k + 2) % 3] + 4*h, X0, h, k + 2, ('PX', k + 2)), []))
            for (vi, grp) in zip(VL[(nt*len(V))//6:], vs[nt]):
                li = [i for i, x in enumerate(grp) if callable(x)][0]
                pre = [x for x in grp[:li] if x != '  s_nop 0']
                if vi[0][0] == 'b' and vi[2] == r and not trw[0]:
                    pre = pre + [lambda: g.wait(('trd', r), lg=('TR', r, 5))]; trw[0] = True
                mem.append((pre, grp[li], grp[li + 1:]))
            if r < 12:
                g.wait(('tr', r, nt), lg=('TR', r, nt))
                if nt == 0 and g.L[-1].startswith('  v_and'): e('  s_nop 0')
                smf(r, nt, 0); smf(r, nt, 1)
                run(P[:2]); P = P[2:]
            n = max(1, len(fs))
            for i in range(n):
                my = mem[(i*len(mem))//n:((i+1)*len(mem))//n]
                m0set = False
                for q, (pre, _, _) in enumerate(my):
                    if any(isinstance(x, str) and ' m0,' in x for x in pre):
                        if m0set or any(isinstance(z, str) for (_, _, pp) in my[:q] for z in pp) or any(True for (pp, mm, _) in my[:q] if getattr(mm, 'dma', False)): continue
                        m0set = True
                    run(pre); my[q] = ([], my[q][1], my[q][2])
                if fs: fmf(fs[i])
                elif m0set: e('  s_nop 0')
                for (pre, mi, po) in my:
                    if pre:
                        run(pre)
                        if len(pre) == 1: e('  s_nop 0')
                    mi(); run(po)
                npv = len(P) if i == n - 1 else max(1, len(P) // (2*(n - i)))
                run(P[:npv]); P = P[npv:]
        if r in (0, 3, 7, 11): pstamp()

    def cvt_i(mt, d): a = ACC[mt]; return f'  v_cvt_pk_bf16_f32 v{a+d}, v{a+2*d}, v{a+2*d+1}'
    def ow(mt, i, par, tag):
        a = ACC[mt] + 4*i
        g.lgop(f'  ds_write_b128 v{vW[i]}, v[{a}:{a+3}] offset:{L_O + par*TILE + mt*HALF}', tag)
    def ord_(t, u):
        g.lgop(f'  ds_read_b128 a[{OB[u]}:{OB[u]+3}], v{vX[u % 3]} offset:{L_O + ((t - 1) & 1)*TILE + (u // 3)*HALF}', ('O', t, u))
    MIX = opts.get('mix', '')
    def stfl(u): return ' nt' if str(u) in MIX else NT_ST
    S0 = opts.get('s0')
    def ost(t, u, key):
        g.wait((key, 'o', u), lg=('O', t, u))
        fl = stfl(u)
        if S0 is not None and isinstance(key, tuple) and key[1] == 0: fl = '' if S0 == 'none' else ' ' + S0
        g.vmop(f'  buffer_store_dwordx4 a[{OB[u]}:{OB[u]+3}], v{vG[u % 3]}, s[{sO}:{sO+3}], s{sSt0 if u < 3 else sSt1} offen{fl}')
    def prd(t, ps, h):
        mt, kp = ps // 6, ps % 6
        xrd(XF[ps % 3] + 4*h, (sig(t) & 1)*TILE, mt, 2*kp + h, ('X', t, ps))

    if barr < 10: e('  s_barrier'); barr = 11
    if sig(1) % 2 == 0:
        for r in vR: e(f'  v_xor_b32 v{r}, 0x14000, v{r}')
    if not OOB: e('  s_mov_b64 vcc, -1')
    e('  s_nop 4')
    for i in range(3):
        for k in range(4): e(cvt_i(0, 4*i + k))
        ow(0, i, 0, ('OW', 0))
    VL = vtake(barr, 99)
    assert not VQ
    for grp in vgroups(VL): run(grp)
    g.wait('pre', vm=('L', 1, 5), lg=('OW', 0))
    e('  s_barrier')
    SCHS = {0: schedule(opts, 0), 1: schedule(opts, 1)}
    OOL = []
    def filler(name, t, par, dyn):
        kind = name[0]; kp = (par, dyn)
        if kind == 'rd': return lambda: prd(t + (name[1] >= 12), name[1] % 12, name[2])
        if kind == 'wx': return lambda: g.wait((kp, 'x', name[1]), lg=('X', t + (name[1] >= 12), name[1] % 12))
        ep = t + name[-1]
        if kind == 'or': return lambda: ord_(ep, name[1])
        if kind == 'os': return lambda: ost(ep, name[1], kp)
        if kind == 'm0': return lambda: e(dma_m0(ep + LA, name[1], sMb))
        if kind == 'dl':
            def f():
                if par == 'pre': e('  s_nop 0')
                if dyn and not OOB and (not GSK or name[1] % 3 == 0):
                    lab[0] += 1
                    e(f'  s_cbranch_vccz L_sk{lab[0]}')
                if WIN and dyn: e(f'  s_waitcnt vmcnt({WIN})')
                dma_ld(ep + LA, name[1])
                if dyn and not OOB and (not GSK or name[1] % 3 == 2): e(f'L_sk{lab[0]}:')
            return f
        if kind == 'np': return lambda: e('  s_nop 0')
        if kind == 'cv': return lambda: e(cvt_i(name[1], name[2]))
        if kind == 'ow': return lambda: ow(name[1], name[2], ep & 1, ('OW', ep))
        if kind == 'mb':
            return lambda: (e(f'  s_xor_b32 s{sMb}, s{sMb}, 0x14000') if sig(ep + LA) % 2 == 0 else None)
        if kind == 'xr':
            return lambda: (e(f'  v_xor_b32 v{vR[name[1]]}, 0x14000, v{vR[name[1]]}') if sig(t + 1) % 2 == 0 else None)
        if dyn:
            if kind == 'sa':
                if name[1] == 0: return lambda: run([f'  s_add_u32 s{sSt1}, s{sSt0}, {HALF}', f'  s_mov_b32 s{sSt0}, s58'])
                return lambda: run(['  s_mov_b32 s58, s59', '  s_mov_b32 s59, s60'][:LA - 1])
            if kind == 'sb': return lambda: e(f'  s_mov_b32 s{57 + LA}, s{sLd}')
            if kind == 'hk':
                k = name[1]
                if k == 0:
                    def f():
                        g.wait((kp, 'hk'), lg=g.lg[-1] if g.mode == 'collect' else 0)
                        assert g.L[-1] == '  s_waitcnt lgkmcnt(0)'
                    return f
                if k == 9: return lambda: run([f'  s_add_u32 s69, s54, {NF}', '  s_lshr_b32 s56, s69, 1'])
                if k == 10: return lambda: run(['  s_bitcmp1_b32 s69, 0', f'  s_cselect_b32 s69, {HALF + 1}, 1'])
                if k == 11: return lambda: run([f'  s_cmp_lt_u32 s54, {NF}', '  s_cselect_b32 s56, s54, s56', '  s_cselect_b32 s69, 0, s69'])
                if k == 1: return lambda: run([f'  s_mul_i32 s56, s56, {4*TILE}', '  s_add_u32 s69, s69, s57'])
                if k == 2: return lambda: run(['  s_add_u32 s56, s56, s69', f'  s_cmp_lt_u32 s54, {NV_}', f'  s_cselect_b32 s56, s56, s{sX+2}'])
                if k == 6: return lambda: run([f'  s_add_u32 s62, s62, s{sStr}', '  s_sub_u32 s61, s61, 1'])
                if k == 7: return lambda: run(['  s_cmp_ge_i32 s61, 0', '  s_cselect_b32 s56, s62, s56'])
                if k == 8: return lambda: run(['  s_cmp_eq_u32 s61, 0', '  s_cselect_b32 s55, s66, s55', f'  s_cselect_b32 s65, {NV_}, s65'])
                if k == 3: return lambda: e(f'  v_mov_b32 v{vZ}, s56')
                if k == 4: return lambda: g.lgop(f'  ds_write_b32 v{vMW}, v{vZ} offset:{4*(ep & 1)}', ('MB', ep))
                if k == 5: return claim
            if kind == 'dm': return lambda: g.lgop(f'  ds_read_b32 v{vZ}, v{vMB} offset:64', 'dummy')
            if kind == 'tr': return lambda: g.lgop(f'  ds_read_b32 v{vTk}, v{vMB} offset:{4*((ep - 1) & 1)}', ('TK', ep))
            if kind == 'tw': return lambda: (g.wait((kp, 'tk'), lg=('TK', ep)), e(f'  v_readfirstlane_b32 s{sLd}, v{vTk}'))
            if kind == 'vc':
                if name[1] == 0: return lambda: run([f'  s_cmp_lt_u32 s{sLd}, s{sX+2}', f'  s_cselect_b32 s{sCnt}, {LA + 2}, s{sCnt}'] + ([] if OOB else ['  s_cselect_b64 vcc, -1, 0']))
                if name[1] == 1: return lambda: run([f'  s_add_u32 s{sLd1}, s{sLd}, {HALF}', f'  s_bitcmp1_b32 s{sLd}, 0'])
                return lambda: run([f'  s_cselect_b32 s{sLd1}, s{sX+2}, s{sLd1}', '  s_cselect_b32 s68, 1, s68', f'  s_andn2_b32 s{sLd}, s{sLd}, 1'])
            if kind == 'hx':
                if name[1] == 0: return lambda: e(f'  s_cmp_eq_u32 s{sCnt}, s68')
                return lambda: (e(f'  s_cbranch_scc1 L_half{par}') if not unroll else None)
            if kind == 'dc': return lambda: e(f'  s_sub_u32 s{sCnt}, s{sCnt}, 1')
            if kind == 'bar':
                def f():
                    lab[0] += 1
                    dmy = any(n[0] == 'dm' for gp in SCHS[1] for n in gp)
                    if g.mode == 'collect' and dmy: assert g.lg[-1] == 'dummy'
                    g.wait((kp, 'bar'), vm=('L', t + 1, 5), lg=g.lg[-2 if dmy else -1] if g.mode == 'collect' else 0)
                    assert 'lgkmcnt' in g.L[-1]
                    if not unroll and not OOB:
                        e(f'  s_cbranch_vccz L_ow{lab[0]}')
                        e(f'L_ob{lab[0]}:')
                        OOL.append(lab[0])
                    if OOB: e(f'  s_cmp_eq_u32 s{sCnt}, 1')
                    e('  s_barrier')
                    if not OOB: e(f'  s_cmp_eq_u32 s{sCnt}, 1')
                    if not unroll: e(f'  s_cbranch_scc1 L_tail{par}')
                return f
        else:
            if kind == 'la': return lambda: e(f'  s_add_u32 s{[sLd, sLd1][name[1]]}, s{[sLd, sLd1][name[1]]}, s{sStr}')
            if kind == 'sa':
                if name[1] == 0: return lambda: e(f'  s_add_u32 s{sSt1}, s{sSt0}, {HALF}')
                return lambda: e(f'  s_add_u32 s{sSt0}, s{sSt0}, s{sStr}')
            if kind == 'dc': return lambda: (run([f'  s_sub_u32 s{sCnt}, s{sCnt}, 1', f'  s_cmp_eq_u32 s{sCnt}, 0']) if par == 0 else None)
            if kind == 'bar':
                return lambda: (g.wait((kp, 'bar'), vm=('L', t + 1, 5), lg=g.lg[-1] if g.mode == 'collect' else 0), e('  s_barrier'))
        raise KeyError(name)
    for gp in range(120, 144):
        for name in SCHS[1][gp]:
            if name[0] in ('xr', 'bar', 'dc', 'la', 'tr', 'tw', 'vc', 'sb', 'hk') or (name[0] == 'wx' and name[1] < 12): continue
            filler(name, 0, 'pre', 0)()
    stamp()

    def iteration(t, dyn, nps=12):
        SCH = SCHS[dyn]
        for ps in range(nps):
            mt, kq = ps // 6, ps % 6
            for nt in range(6):
                for h in range(2):
                    mfma(mt, nt, 2*kq + h, XF[ps % 3] + 4*h)
                    if ST and ps == 11 and nt == 2 and h == 1: stamp()
                    for name in SCH[12*ps + 2*nt + h]: filler(name, t, t & 1, dyn)()

    SCH = SCHS[1]
    done_or = [n[1] for gp in range(120, 144) for n in SCH[gp] if n[0] == 'or']
    done_os = [n[1] for gp in range(120, 144) for n in SCH[gp] if n[0] == 'os']
    vm_of = lambda S: [n for gp in range(120, 144) for n in S[gp] if n[0] in ('or', 'os', 'dl')]
    assert sorted(vm_of(SCHS[0])) == sorted(vm_of(SCHS[1]))
    def tail(t):
        st = lambda u: e(f'  buffer_store_dwordx4 a[{OB[u]}:{OB[u]+3}], v{vG[u % 3]}, s[{sO}:{sO+3}], s{sSt0 if u < 3 else sSt1} offen{stfl(u)}')
        fl = {}
        for u in range(6): fl[u] = [lambda u=u: ord_(t + 1, u)]
        for u in range(6): fl[6 + 2*u] = [f'  s_waitcnt lgkmcnt({5-u})', lambda u=u: st(u)]
        gp = 0; done = []
        for nt in range(6):
            for q in range(4):
                mfma(1, nt, 8 + q, XF[(10 + q // 2) % 3] + 4*(q & 1))
                run(fl.get(gp, []))
                if gp in (17, 19): run([cvt_i(1, gp - 17), cvt_i(1, gp - 16)])
                if gp == 20: ow(1, 0, (t + 1) & 1, 'T')
                gp += 1
        if ST: stamp()
        e(f'  s_add_u32 s{sSt1}, s{sSt0}, {HALF}')
        for k in range(4): e(cvt_i(1, 4 + k))
        ow(1, 1, (t + 1) & 1, 'T')
        for k in range(4): e(cvt_i(1, 8 + k))
        ow(1, 2, (t + 1) & 1, 'T')
        e('  s_waitcnt lgkmcnt(0)')
        e('  s_barrier')
        for u in range(3):
            e(f'  ds_read_b128 a[{XF[0]+4*u}:{XF[0]+4*u+3}], v{vX[u]} offset:{L_O + ((t + 1) & 1)*TILE + HALF}')
        for u in range(3):
            e(f'  s_waitcnt lgkmcnt({2-u})')
            e(f'  buffer_store_dwordx4 a[{XF[0]+4*u}:{XF[0]+4*u+3}], v{vG[u]}, s[{sO}:{sO+3}], s{sSt1} offen{stfl(u+3)}')
        e('  s_branch L_fin' if ST else '  s_endpgm')
    def htail(t):
        pend = [n[1] for gp in range(72, 120) for n in SCH[gp] if n[0] == 'os']
        assert not [n for gp in range(72) for n in SCH[gp] if n[0] in ('cv', 'ow') and n[1] == 0]
        assert not [n for gp in range(72, 120) for n in SCH[gp] if n[0] in ('cv', 'ow') and n[1] == 1]
        st = lambda u: e(f'  buffer_store_dwordx4 a[{OB[u]}:{OB[u]+3}], v{vG[u % 3]}, s[{sO}:{sO+3}], s{sSt0 if u < 3 else sSt1} offen{stfl(u)}')
        e('  s_nop 1')
        for i in range(3):
            for k in range(4): e(cvt_i(0, 4*i + k))
            ow(0, i, t & 1, 'H')
        for u in pend: st(u)
        e(f'  s_add_u32 s{sSt1}, s{sSt0}, {HALF}')
        e(f'  s_mov_b32 s{sSt0}, s58')
        e('  s_waitcnt lgkmcnt(0)')
        e('  s_barrier')
        for u in range(6): ord_(t + 1, u)
        for u in range(6):
            e(f'  s_waitcnt lgkmcnt({5-u})'); st(u)
        e('  s_branch L_fin' if ST else '  s_endpgm')
    if unroll:
        for t in range(1, NTILE + 1): iteration(t, 1)
        iteration(NTILE + 1, 1, 10)
        tail(NTILE + 1)
    else:
        e('.p2align 6')
        e('L_loop0:')
        iteration(1, 1)
        e('L_mid0:')
        iteration(0, 1)
        e('  s_branch L_loop0')
        e('L_tail1:')
        tail(1)
        e('L_tail0:')
        tail(0)
        for p in range(2):
            e(f'L_half{p}:')
            htail(p)
    if ST:
        e('L_fin:')
        e('  s_waitcnt lgkmcnt(0)'); stamp()
        e(f'  v_writelane_b32 v{VR_}, s94, 42')
        e('  s_mov_b32 s94, 40')
        e('  s_waitcnt vmcnt(0) lgkmcnt(0)'); stamp(); e('  s_waitcnt lgkmcnt(0)'); stamp()
        for s in ('s_load_dwordx2 s[86:87], s[0:1], 40', 's_waitcnt lgkmcnt(0)', 's_getreg_b32 s92, hwreg(HW_REG_XCC_ID)',
                  f'v_writelane_b32 v{VR_}, s92, 62',
                  's_mov_b32 s88, s86', 's_and_b32 s89, s87, 0xffff', 's_mov_b32 s90, 1048576', 's_mov_b32 s91, 0x00020000',
                  's_lshl_b32 s92, s2, 11', f's_lshl_b32 s93, s{sW}, 9', 's_add_u32 s92, s92, s93',
                  'v_mbcnt_lo_u32_b32 v1, -1, 0', 'v_mbcnt_hi_u32_b32 v1, -1, v1', 'v_lshlrev_b32 v1, 2, v1',
                  f'buffer_store_dword v{VR_}, v1, s[88:91], s92 offen', f'buffer_store_dword v{VT_}, v1, s[88:91], s92 offen offset:256', 's_waitcnt vmcnt(0)'):
            e('  ' + s)
        e('  s_endpgm')
    seq = [n[0] for gp in list(range(120, 144)) + list(range(120)) for n in SCH[gp] if n[0] in ('dl', 'os')]
    after = len(seq) - 1 - max(i for i, k in enumerate(seq) if k == 'dl')
    for l in OOL:
        e(f'L_ow{l}:')
        e(f'  s_cmp_eq_u32 s{sCnt}, 1')
        e(f'  s_cbranch_scc1 L_ob{l}')
        if LA == 3:
            e(f'  s_waitcnt vmcnt({after + 18})')
            e(f'  s_cmp_eq_u32 s{sCnt}, 3')
            e(f'  s_cbranch_scc1 L_ob{l}')
            e(f'  s_waitcnt vmcnt({after + 12})')
        else:
            e(f'  s_waitcnt vmcnt({after + 6})')
        e(f'  s_branch L_ob{l}')
    e('L_done:')
    e('  s_endpgm')
    e('.section .rodata,"a"')
    e('.p2align 6')
    e(f'.amdhsa_kernel {NAME}')
    e('  .amdhsa_next_free_vgpr 512')
    e('  .amdhsa_next_free_sgpr 100')
    e('  .amdhsa_accum_offset 256')
    e('  .amdhsa_group_segment_fixed_size 0')
    e('  .amdhsa_kernarg_size 48')
    e('  .amdhsa_user_sgpr_count 2')
    e('  .amdhsa_user_sgpr_kernarg_segment_ptr 1')
    e('  .amdhsa_system_sgpr_workgroup_id_x 1')
    e('  .amdhsa_float_denorm_mode_32 3')
    e('.end_amdhsa_kernel')

def schedule(opts, dyn):
    S = [[] for _ in range(144)]
    def put(ps, gp, *names): S[12*ps + gp] += list(names)
    for ps in range(12):
        put(ps, 0, ('rd', ps + 2, 0)); put(ps, 1, ('rd', ps + 2, 1))
        put(ps, 11, ('wx', ps + 1))
    S[12*9 + 11] = [('bar', 0)]
    ep = lambda ps: 1 if ps >= 10 else 0
    sps = [int(z) for z in opts.get('sps', '10,0,2,4,6,8').split(',')]; dps = [int(z) for z in opts.get('dps', '11,1,3,5,7,9').split(',')]
    sord = [int(z) for z in opts.get('sord', '0,1,2,3,4,5').split(',')]
    for u in range(6):
        ps = dps[u]; k = dps[:u].count(ps)
        if k == 0: put(ps, 7, ('m0', u, ep(ps))); put(ps, 8, ('dl', u, ep(ps)))
        elif int(opts.get('dgap', 0)): put(ps, 7 + k, ('m0', u, ep(ps))); put(ps, 8 + k, ('dl', u, ep(ps)))
        else: put(ps, 8, ('m0', u, ep(ps)), ('np', 0), ('dl', u, ep(ps)))
    for i, u in enumerate(sord):
        ps = sps[i]; base = 10 if ps == 10 else (3 if ps in dps else 8)
        put(ps, base + min(1, sps[:i].count(ps)), ('os', u, ep(ps)))
    put(10, 2, ('or', sord[0], 1)); put(10, 4, ('or', sord[1], 1)); put(10, 5, ('or', sord[2], 1))
    o2 = 2 if 11 not in sps else 5
    put(11, o2, ('or', sord[3], 1)); put(11, o2 + 1 if o2 == 2 else 9, ('or', sord[4], 1)); put(11, o2 + 2 if o2 == 2 else 10, ('or', sord[5], 1))
    put(9, 3, ('xr', 0)); put(9, 4, ('xr', 1)); put(9, 5, ('xr', 2)); put(9, 6, ('xr', 3))
    put(11, 6, ('mb', 1))
    put(9, 9, ('sa', 0, 0)); put(9, 10, ('sa', 1, 0))
    if dyn:
        HP = int(opts.get('hp', 4)); HC = int(opts.get('hc', HP))
        put(10, 3, ('tr', 1)); put(10, 6, ('sb', 1)); put(10, 9, ('tw', 1)); put(10, 11, ('vc', 0, 1)); put(11, 0, ('vc', 1, 1)); put(11, 1, ('vc', 2, 1))
        put(5, 10, ('hx', 0, 0)); put(5, 11, ('hx', 1, 0))
        S[12*(HP - 1) + 11] = [('hk', 0, 0)]
        put(4, 3, ('hk', 6, 0)); put(4, 4, ('hk', 8, 0))
        for i, k in enumerate((9, 10, 11, 1, 2, 7, 3)): put(HP, i, ('hk', k, 0))
        put(HP, 7, ('hk', 4, 0))
        assert HP > 4
        if HC == HP:
            put(HP, 9, ('hk', 5, 0)); put(9, 2, ('dm', 0))
        else: put(HC, 7 if HC == 10 else 5, ('hk', 5, ep(HC)))
    else:
        put(4, 3, ('la', 0, 0)); put(10, 6, ('la', 1, 1))
    for i in range(3):
        ps = 1 + i
        for k in range(4): put(ps, 2 + k, ('cv', 1, 4*i + k, 0))
        put(ps, 10 if ps % 2 else 6, ('ow', 1, i, 0))
        ps = 6 + i
        for k in range(4): put(ps, 2 + k, ('cv', 0, 4*i + k, 0))
        put(ps, 10 if ps % 2 else 6, ('ow', 0, i, 0))
    put(11, 5, ('dc', 0))
    return S

if __name__ == '__main__':
    out = sys.argv[1]
    opts = dict(a.split('=', 1) for a in sys.argv[2:])
    for k in ('nt_ld', 'nt_st'):
        if k in opts: opts[k] = (' ' + opts[k].replace('+', ' ')) if opts[k] != 'none' else ''
    open(out, 'w').write(gen(opts))
```

```python
import sys, re
from gen20 import regs_of, hazard_check, HDR, NAME
from gen21 import G

def gen(opts):
    g = G()
    build(g, opts, True)
    g.reset('check')
    build(g, opts, True)
    hazard_check(g.L)
    g.reset('emit')
    build(g, opts, False)
    return '\n'.join(g.L) + '\n'

def build(g, opts, unroll):
    e = g.e
    I = lambda k, d: int(opts.get(k, d))
    NT_LD = opts.get('nt_ld', ' nt'); NT_ST = opts.get('nt_st', ' sc1')
    ST = I('st', 0); CPF = I('cpf', 1); ASYM = 0; DYN = 1; NS = I('ns', 4); RF = I('rf', 4); PM = I('pm', 0); DUM = I('dum', 0)
    assert not (ASYM and DYN)
    TILE = 24576; HALF = 12288; STRIDE = 256 * TILE; XB = 113246208
    NTILE = 19 if ASYM else 18
    SST = I('sst', 15); T1 = 0; LA = I('la', 3); WIN = I('win', 0); OOB = I('oob', 1); GSK = I('gsk', 0)
    NPOOL = (4608 - SST*256) // 4
    NH = I('nh', 32); NF = NPOOL - NH // 2; NV_ = NF + NH
    assert NH <= 64 and NH % 2 == 0 and not I('bias', 0)
    L_O = 0; L_X = 2 * TILE; L_D = L_X + 4 * TILE; L_TOT = L_D + 4096
    vX = [1, 2, 3]; vG = [4, 5, 6]; vR = [7, 8, 9, 10]; vW = [11, 12, 13]; vBL = [14, 15, 16]; vTr = [17, 104]; vD = 18; vM = [19, 20]
    VR_, VT_ = 21, 22; vZ = 23
    ACC = [24, 48]; DT = [72, 80, 88]; DG = [96, 100]; vMB = 105; vMW = 106; vTk = 107; vP = 108; BV = 112; NVU = 6
    T = list(range(72, 96))
    RAWF = [144, 168]; XF = [192, 200, 208]; OB = [216 + 4*i for i in range(6)]
    sX, sO, sP, sD = 4, 8, 12, 16
    sW, sLd, sSt0, sSt1, sCnt, sM, sBs, sBo, sLd1, sMb, sDl = 20, 21, 22, 23, 32, 33, 34, 36, 37, 42, 43
    sStr, sAlt = 44, 45
    VFIRST = I('vfirst', 0)
    def bloc(ks):
        if VFIRST: return ('v', BV + 24*ks) if ks < NVU else ('a', 24*(ks - NVU))
        return ('a', 24*ks) if ks < 12 - NVU else ('v', BV + 24*(ks - (12 - NVU)))
    def breg(ks, nt):
        f, b = bloc(ks); return f'{f}[{b+4*nt}:{b+4*nt+3}]'
    def run(items):
        for it in items:
            if callable(it): it()
            else: e(it)
    def stamp(first=False):
        if not ST: return
        if not first:
            e('  s_mov_b32 m0, s94'); e(f'  v_writelane_b32 v{VR_}, s90, m0'); e(f'  v_writelane_b32 v{VT_}, s92, m0'); e('  s_add_u32 s94, s94, 1')
        e('  s_memrealtime s[90:91]'); e('  s_memtime s[92:93]')
    def pstamp():
        if ST < 2: return
        e('  s_waitcnt lgkmcnt(0)'); stamp()
    sig = lambda t: t + NS - 2
    slot = lambda ks: (ks + (14 % NS if NS == 4 else (2 if NS == 3 else 0))) % NS
    assert slot(10) == 0 and slot(11) == 1
    def ring_free_unit(t):
        s = (sig(t) & 3) + 2
        ks = [k for k in range(12) if slot(k) == s]
        return ks[-1] if ks else -1

    e(HDR.rstrip('\n'))
    e(f'; @launch grid=(256,1,1) block=(256,1,1) lds={L_TOT}')
    e('.amdgcn_target "amdgcn-amd-amdhsa--gfx950"')
    e('.text')
    e(f'.globl {NAME}')
    e('.p2align 8')
    e(f'.type {NAME},@function')
    e(f'{NAME}:')
    e('  s_cmp_ge_u32 s2, 256')
    e('  s_cbranch_scc1 L_done')
    e('  s_load_dwordx4 s[28:31], s[0:1], 16')
    e('  s_load_dwordx4 s[24:27], s[0:1], 0')
    if DYN: e('  s_load_dwordx2 s[52:53], s[0:1], 32')
    if ST:
        e('  s_mov_b32 s94, 0'); stamp(True)
    lane, lo4, hi2 = T[2], T[3], T[4]
    if CPF:
        e('  s_getpc_b64 s[40:41]')
        e('L_pc:')
        if CPF == 2:
            e('  s_bfe_u32 s38, s2, 0x20003')
            e(f'  v_and_or_b32 v{T[0]}, v0, -4, s38')
            e(f'  v_lshlrev_b32 v{T[0]}, 7, v{T[0]}')
        elif CPF == 3:
            e('  s_bfe_u32 s38, s2, 0x30003')
            e(f'  v_and_or_b32 v{T[0]}, v0, -8, s38')
            e(f'  v_lshlrev_b32 v{T[0]}, 7, v{T[0]}')
        else:
            e(f'  v_lshlrev_b32 v{T[0]}, 7, v0')
        e(f'  v_min_u32 v{T[0]}, L_done-L_pc, v{T[0]}')
        e(f'  v_mov_b32 v{T[1]}, s41')
        e(f'  v_add_co_u32 v{T[0]}, vcc, s40, v{T[0]}')
        e(f'  v_lshrrev_b32 v{T[5]}, 6, v0')
        e(f'  v_and_b32 v{lane}, 63, v0')
        e(f'  v_addc_co_u32 v{T[1]}, vcc, 0, v{T[1]}, vcc')
        g.vmop(f'  global_load_dword v{vZ}, v[{T[0]}:{T[1]}], off')
    else:
        e(f'  v_lshrrev_b32 v{T[5]}, 6, v0')
        e(f'  v_and_b32 v{lane}, 63, v0')
    e(f'  v_readfirstlane_b32 s{sW}, v{T[5]}')
    e(f'  v_and_b32 v{lo4}, 15, v{lane}')
    e(f'  v_lshlrev_b32 v{T[6]}, 4, v{lane}')
    e(f'  v_lshlrev_b32 v{T[7]}, 4, v{lo4}')
    e('  s_lshr_b32 s47, s2, 3')
    e('  s_mul_i32 s39, s47, 9216')
    e(f'  s_mul_i32 s38, s{sW}, 2304')
    e('  s_add_u32 s39, s39, s38')
    e('  s_and_b32 s38, s2, 7')
    e('  s_lshl_b32 s38, s38, 5')
    e('  s_add_u32 s38, s38, s47')
    e(f'  s_mul_i32 s{sLd}, s38, {TILE}')
    for u in range(3):
        src = 0
        if u: e(f'  v_add_u32 v{T[8]}, {256*u}, v0'); src = T[8]
        e(f'  v_mul_u32_u24 v{T[9]}, 0xaaab, v{src}')
        e(f'  v_lshrrev_b32 v{T[9]}, 21, v{T[9]}')
        e(f'  v_xor_b32 v{T[8]}, v{src}, v{T[9]}')
        e(f'  v_lshlrev_b32 v{vX[u]}, 4, v{T[8]}')
    e(f'  s_add_u32 s{sLd1}, s{sLd}, {HALF}')
    e(f'  s_mov_b32 s{sSt0}, s{sLd}')
    e(f'  s_mov_b32 s{sX+2}, {XB}')
    e(f'  s_mov_b32 s{sX+3}, 0x00020000')
    e(f'  s_lshl_b32 s{sM}, s{sW}, 10')
    e(f'  s_mul_i32 s{sBs}, s{sW}, 6144')
    e(f'  s_mov_b32 s{sBo}, 0')
    e(f'  s_mov_b32 s{sP+2}, 294912')
    e(f'  s_mov_b32 s{sP+3}, 0x00020000')
    e(f'  s_mov_b32 s{sD+2}, 768')
    e(f'  s_mov_b32 s{sD+3}, 0x00020000')
    e(f'  s_add_u32 m0, s{sM}, {L_D}')
    e('  s_waitcnt lgkmcnt(0)')
    def srd(sd, lo, nbytes=None):
        e(f'  s_mov_b32 s{sd}, s{lo}')
        e(f'  s_and_b32 s{sd+1}, s{lo+1}, 0xffff')
        if nbytes:
            e(f'  s_mov_b32 s{sd+2}, {nbytes}')
            e(f'  s_mov_b32 s{sd+3}, 0x00020000')
    srd(sP, 28)
    if I('warm', 1):
        g.vmop(f'  buffer_load_dwordx4 a[{OB[0]}:{OB[0]+3}], v{T[6]}, s[{sP}:{sP+3}], s39 offen')
        g.vmop(f'  buffer_load_dwordx4 a[{OB[1]}:{OB[1]+3}], v{T[6]}, s[{sP}:{sP+3}], s39 offen offset:1024')
        g.vmop(f'  buffer_load_dwordx4 a[{OB[2]}:{OB[2]+3}], v{T[7]}, s[{sP}:{sP+3}], s39 offen offset:2048')
    srd(sD, 26)
    g.vmop(f'  buffer_load_dwordx4 v{T[6]}, s[{sD}:{sD+3}], 0 offen lds', 'dw')
    pstamp()
    def bitems(ks):
        it = []
        for h in range(2):
            pre = [f'  s_add_u32 m0, s{sBs}, {slot(ks)*TILE + h*3072}', f'  s_add_u32 s{sBo}, s{sBo}, {HALF}' if (ks or h) else '  s_nop 0']
            for i in range(3):
                ld = lambda i=i, h=h: g.vmop(f'  buffer_load_dwordx4 v{vBL[i]}, s[{sP}:{sP+3}], s{sBo} offen offset:{i*1024} lds', ('B', ks, 3*h + i))
                ld.dma = True
                it.append((pre if i == 0 else []) + [ld])
        return it
    def dma_m0(t, u, mreg=None):
        if mreg is None: return f'  s_add_u32 m0, s{sM}, {L_X + (sig(t) & 3)*TILE + u*4096}'
        return f'  s_add_u32 m0, s{mreg}, {(sig(t) & 1)*TILE + u*4096}'
    def dma_ld(t, u):
        g.vmop(f'  buffer_load_dwordx4 v{vX[u % 3]}, s[{sX}:{sX+3}], s{sLd if u < 3 else sLd1} offen{NT_LD} lds', ('L', t, u))
    def xitems(t):
        it = []
        for u in range(6):
            ld = lambda u=u: dma_ld(t, u)
            ld.dma = True
            it.append([dma_m0(t, u), '  s_nop 0', ld])
        it[3][1] = f'  s_add_u32 s{sLd}, s{sLd}, {STRIDE}'
        it[5].append(f'  s_add_u32 s{sLd1}, s{sLd1}, {STRIDE}')
        return it
    PLAN = opts.get('plan', 'b0.b1.b2.b3.x0.b4.b5.b6.b7.b8.b9.b10.b11.x1.x2.x3').split('.')
    CAP = [int(z) for z in opts.get('cap', '12,6,12,12,6,6,6,6,6,6,6,6,6,6,6').split(',')]
    VQ = []
    for it in PLAN:
        k = int(it[1:])
        if it[0] == 'p':
            VQ.append((it, 0, -9)); continue
        early = (k - NS if k >= NS else -9) if it[0] == 'b' else (ring_free_unit(k) if ring_free_unit(k) >= 0 else -9)
        VQ += [(it, j, early) for j in range(6)]
    def vtake(r, n):
        out = []
        while VQ and VQ[0][2] <= r and (len(out) < n or (VQ[0][0][0] == 'b' and VQ[0][1] % 3)):
            out.append(VQ.pop(0))
        return out
    def vgroups(lst):
        pitems = lambda t: [[f'  s_add_u32 s50, s{sSt0}, {t*STRIDE}', lambda: g.vmop(f'  buffer_load_dword v{vZ}, v{vP}, s[{sX}:{sX+3}], s50 offen')]]
        return [{'b': bitems, 'x': xitems, 'p': pitems}[it[0]](int(it[1:]))[j] for (it, j, _) in lst]
    def bsetup():
        e(f'  s_mul_i32 s38, s{sW}, 192')
        for i in range(3):
            src = lane
            if i: e(f'  v_add_u32 v{T[8]}, {64*i}, v{lane}'); src = T[8]
            run([f'  v_mul_u32_u24 v{T[9]}, 0xaaab, v{src}', f'  v_lshrrev_b32 v{T[9]}, 19, v{T[9]}',
                 f'  v_mul_u32_u24 v{T[9]}, 576, v{T[9]}',
                 f'  v_add3_u32 v{vBL[i]}, v{T[9]}, v{T[6]}, s38'])
    V0 = vtake(-2, CAP[0])
    srd(sX, 24)
    if I('tlb', 0):
        for k in range(I('tlb', 0)):
            e(f'  s_add_u32 s70, s{sLd}, {k*STRIDE}')
            e(f'  s_load_dword s72, s[24:25], s70')
            if k < 2: e(f'  s_load_dword s73, s[30:31], s70')
    if V0[0][0][0] != 'x': bsetup()
    for grp in vgroups(V0[:6]): run(grp)
    if V0[0][0][0] == 'x': bsetup()
    e(f'  v_lshrrev_b32 v{hi2}, 4, v{lane}')
    e(f'  v_lshlrev_b32 v{vD}, 4, v{hi2}')
    e(f'  v_add_u32 v{vD}, s{sM}, v{vD}')
    e(f'  v_add_u32 v{vD}, {L_D}, v{vD}')
    e(f'  v_bfe_u32 v{T[9]}, v{lane}, 2, 2')
    e(f'  v_and_b32 v{T[10]}, 3, v{lane}')
    e(f'  v_lshl_add_u32 v{T[11]}, v{hi2}, 3, v{T[9]}')
    e(f'  v_mul_u32_u24 v{T[11]}, 192, v{T[11]}')
    e(f'  v_mul_u32_u24 v{T[12]}, 48, v{T[10]}')
    e(f'  v_add3_u32 v{vTr[0]}, v{T[11]}, v{T[12]}, s{sBs}')
    e(f'  v_add_u32 v{vTr[1]}, {2*TILE}, v{vTr[0]}')
    e(f'  v_lshlrev_b32 v{T[11]}, 4, v{T[10]}')
    e(f'  v_mov_b32 v{T[12]}, 0xffff')
    e(f'  v_cmp_lt_u32 vcc, 1, v{T[10]}')
    e(f'  v_lshlrev_b32 v{T[12]}, v{T[11]}, v{T[12]}')
    e(f'  v_mul_u32_u24 v{T[8]}, 0x300, v{lo4}')
    e(f'  v_cndmask_b32 v{vM[1]}, 0, v{T[12]}, vcc')
    e(f'  v_sub_u32 v{vM[0]}, v{T[12]}, v{vM[1]}')
    for grp in vgroups(V0[6:6 + I('db', 6)]): run(grp)
    srd(sO, 30, XB)
    e(f'  v_lshlrev_b32 v{vG[0]}, 4, v0')
    for u in range(1, 3): e(f'  v_add_u32 v{vG[u]}, {4096*u}, v{vG[0]}')
    e(f'  v_xor_b32 v{T[9]}, v{hi2}, v{lo4}')
    e(f'  v_lshl_add_u32 v{vR[0]}, v{T[9]}, 4, v{T[8]}')
    pb = lambda t: L_X + ((sig(t) & 3) >> 1) * 2 * TILE
    e(f'  v_add_u32 v{vR[0]}, {pb(0)}, v{vR[0]}')
    for s in range(1, 4): e(f'  v_xor_b32 v{vR[s]}, {s*64}, v{vR[0]}')
    e(f'  s_mul_i32 s38, s{sW}, 12')
    e(f'  v_mul_u32_u24 v{T[9]}, 3, v{hi2}')
    e(f'  v_add_u32 v{T[9]}, s38, v{T[9]}')
    for i in range(3):
        e(f'  v_add_u32 v{T[10]}, {i}, v{T[9]}')
        e(f'  v_xor_b32 v{T[10]}, v{T[10]}, v{lo4}')
        e(f'  v_lshl_add_u32 v{vW[i]}, v{T[10]}, 4, v{T[8]}')
    e(f'  s_mov_b32 s{sSt1}, {XB}')
    e(f'  s_mov_b32 s{sStr}, {STRIDE}')
    e(f'  s_add_u32 s{sMb}, s{sM}, {pb(LA + 1) ^ (0x14000 if sig(LA + 1) % 2 == 0 else 0)}')
    e('  s_mov_b32 s51, 1')
    if ASYM:
        e('  s_bitcmp1_b32 s2, 0')
        e(f'  s_cselect_b32 s{sCnt}, 16, 18')
        e(f'  s_cselect_b32 s{sAlt}, s{sStr}, {32*TILE}')
    elif DYN:
        if PM:
            e('  s_bfe_u32 s38, s2, 0x20001')
            e(f'  s_mul_i32 s57, s38, {64*TILE}')
        else:
            e('  s_and_b32 s38, s47, 3')
            e(f'  s_mul_i32 s57, s38, {TILE}')
        e(f'  s_add_u32 s57, s57, {SST*STRIDE}')
        e('  s_lshl_b32 s38, s38, 6')
        e('  s_add_u32 s52, s52, s38')
        e('  s_addc_u32 s53, s53, 0')
        e(f'  s_mov_b32 s55, {NF}')
        e('  s_mov_b32 s68, 0')
        e(f'  s_cmp_eq_u32 s{sW}, 0')
        e('  s_cselect_b32 s66, s55, 0')
        e('  s_mov_b32 s55, 0')
        e('  s_mov_b32 s65, 0')
        e(f'  s_mov_b32 s61, {SST - LA - 2}')
        e(f'  s_add_u32 s62, s{sSt0}, {(LA+1)*STRIDE}')
        e('  s_mov_b32 s54, 0')
        for k in range(LA): e(f'  s_add_u32 s{58+k}, s{sSt0}, {(k+1)*STRIDE}')
        e(f'  s_mov_b32 s{sCnt}, {LA + 1}')
        e(f'  v_mov_b32 v{vMB}, {L_D}')
        e(f'  v_add_u32 v{vMW}, s{sM}, v{vMB}')
    else:
        e(f'  s_mov_b32 s{sCnt}, 17')
    lab = [0]
    def claim():
        lab[0] += 1
        e('  s_cmp_lt_u32 s54, s55')
        e('  s_cselect_b32 s54, 1, s65')
        e(f'  s_cbranch_scc0 L_cl{lab[0]}')
        e('  s_atomic_add s54, s[52:53], 0 glc')
        e(f'L_cl{lab[0]}:')
    pstamp()

    def acc(mt, nt): a = ACC[mt] + 4*nt; return f'v[{a}:{a+3}]'
    def mfma(mt, nt, ks, x):
        e(f'  v_mfma_f32_16x16x32_bf16 {acc(mt, nt)}, {breg(ks, nt)}, a[{x}:{x+3}], {"0" if ks == 0 else acc(mt, nt)}')
    def xrd(dst, slotoff, mt, ks, tag):
        g.lgop(f'  ds_read_b128 a[{dst}:{dst+3}], v{vR[ks & 3]} offset:{slotoff + mt*HALF + (ks >> 2)*256}', tag)
    def titems(ks):
        R = RAWF[ks & 1]; D = DG[ks & 1]; s = slot(ks)
        it = [lambda: g.wait(('b', ks), vm=('B', ks, 5))]
        it.append(None)
        for nt in range(6):
            for hh in range(2):
                it.append(lambda nt=nt, hh=hh: g.lgop(f'  ds_read_b64_tr_b16 a[{R+4*nt+2*hh}:{R+4*nt+2*hh+1}], v{vTr[s >> 1]} offset:{(s & 1)*TILE + hh*768 + nt*8}', ('TR', ks, nt)))
        return it
    def mitems(ks): return []
    DGA = 208
    def diag_build():
        g.wait('dwl', vm='dw')
        for ks in range(12): g.lgop(f'  ds_read_b128 v[{ACC[0]+4*ks}:{ACC[0]+4*ks+3}], v{vD} offset:{64*ks}', ('DW', ks))
        for ks in range(12):
            if ks % 3 == 0: g.wait(('dw', ks), lg=('DW', ks + 2))
            for q in range(4): e(f'  v_and_b32 v{ACC[0]+4*ks+q}, v{vM[q & 1]}, v{ACC[0]+4*ks+q}')
            for q in range(4): e(f'  v_accvgpr_write_b32 a{DGA+4*ks+q}, v{ACC[0]+4*ks+q}')
    def smf(ks, nt, h):
        R = RAWF[ks & 1] + 4*nt + 2*h; D = DGA + 4*ks + 2*h; o = DT[nt % 3] + 4*h
        e(f'  v_mfma_f32_4x4x4_16b_bf16 v[{o}:{o+3}], a[{D}:{D+1}], a[{R}:{R+1}], 0')
    posted = set(); barr_ = [-1]; early = [0]
    def post(ks, nt):
        f, b = bloc(ks); o = DT[nt % 3]
        if f == 'v': it = [f'  v_cvt_pk_bf16_f32 v{b+4*nt+q}, v{o+2*q}, v{o+2*q+1}' for q in range(4)]
        else: it = ([f'  v_cvt_pk_bf16_f32 v{o+2*q}, v{o+2*q}, v{o+2*q+1}' for q in range(4)] +
                    [f'  v_accvgpr_write_b32 a{b+4*nt+q}, v{o+2*q}' for q in range(4)])
        return it + [lambda: posted.add((ks, nt))]
    X0 = (sig(0) & 1) * TILE
    def pxrd(k):
        xrd(XF[k % 2], X0, 0, k, ('PX', k)); xrd(XF[k % 2] + 4, X0, 1, k, ('PX', k))
    def fmf(i):
        k, j = i // 12, i % 12
        mt, nt = (j & 1, j // 2) if (k < 11 or not I('l11', 1)) else [(0,0),(0,1),(0,2),(0,3),(1,0),(0,4),(0,5),(1,1),(1,2),(1,3),(1,4),(1,5)][j]
        assert (k, nt) in posted, (k, j)
        if j == 0: g.wait(('px', k), lg=('PX', k))
        mfma(mt, nt, k, XF[k % 2] + 4*mt)
        if k == 11 and I('l11', 1) and barr_[0] >= 10:
            a_ = ACC[0]
            if j in (8, 9, 10, 11):
                for q in (2*(j - 8), 2*(j - 8) + 1): e(f'  v_cvt_pk_bf16_f32 v{a_+q}, v{a_+2*q}, v{a_+2*q+1}')
                early[0] = 2*(j - 8) + 2
    cum = {}
    for r in range(13):
        if r < RF: cum[r] = 0
        else: cum[r] = min(12*r, (144*(r - RF + 1)) // (13 - RF)) if r < 12 else 144
    diag_build()
    for grp in vgroups(V0[6 + I('db', 6):12]): run(grp)
    for grp in vgroups(V0[12:]): run(grp)
    run([x for x in titems(0) if x])
    XB0 = I('xb0', 1) and PLAN[0] == 'x0'
    if XB0:
        g.wait('x0', vm=('L', 0, 5)); e('  s_barrier'); pxrd(0)
    for grp in vgroups(vtake(-1, CAP[1])): run(grp)
    run(mitems(0))
    barr = -1
    for r in range(13):
        F = list(range(cum[r - 1] if r else 0, cum[r]))
        TI = titems(r + 1) if r + 1 < 12 else []
        MI = mitems(r + 1) if r + 1 < 12 else []
        VL = vtake(r, CAP[2 + r]); V = vgroups(VL)
        need = max([ea for (it, j, ea) in VL if it[0] == 'x'] + [-1])
        b = need > barr
        if r == RF and not XB0:
            g.wait('x0', vm=('L', 0, 5)); b = True
        if r == I('bx', 99): b = True
        if b:
            if r < 12: g.wait(('trb', r), lg=('TR', r, 5))
            e('  s_barrier'); barr = min(r, 11); barr_[0] = barr
        if r == RF and not XB0: pxrd(0)
        fss = [F[(nt*len(F))//6:((nt+1)*len(F))//6] for nt in range(6)]
        if r == RF and len(F) > 6 and not XB0: fss[1] = fss[0] + fss[1]; fss[0] = []
        vs = [V[(nt*len(V))//6:((nt+1)*len(V))//6] for nt in range(6)]
        trw = [False]
        for nt in range(6):
            fs = fss[nt]
            P = post(r, nt - 2) if (nt >= 2 and r < 12) else (post(r - 1, nt + 4) if (nt < 2 and r >= 1) else [])
            if len(P) == 9: P = [P[0], P[1], P[2], P[4], P[3], P[5], P[6], P[7], P[8]]
            if nt == 4: P = P + MI[:3]
            if nt == 5: P = MI[3:] + P
            mem = []
            if TI:
                mem.append(([], TI[2 + 2*nt], []))
                mem.append(([], TI[3 + 2*nt], []))
            for m in fs:
                k, j = m // 12, m % 12
                if j in (2, 4) and k + 1 < 12:
                    mem.insert(1, ([], lambda k=k, h=(j - 2) // 2: xrd(XF[(k + 1) % 2] + 4*h, X0, h, k + 1, ('PX', k + 1)), []))
            for (vi, grp) in zip(VL[(nt*len(V))//6:], vs[nt]):
                li = [i for i, x in enumerate(grp) if callable(x)][0]
                pre = [x for x in grp[:li] if x != '  s_nop 0']
                if vi[0][0] == 'b' and vi[2] == r and not trw[0]:
                    pre = pre + [lambda: g.wait(('trd', r), lg=('TR', r, 5))]; trw[0] = True
                mem.append((pre, grp[li], grp[li + 1:]))
            if r < 12:
                if nt == 0: g.wait(('tr', r, nt), vm=('B', r + 1, 5) if TI else None, lg=('TR', r, 2 if r else 0))
                elif nt == 3 or r == 0: g.wait(('tr', r, nt), lg=('TR', r, 5 if r else nt))
                smf(r, nt, 0); smf(r, nt, 1)
                run(P[:2]); P = P[2:]
            n = max(1, len(fs))
            for i in range(n):
                my = mem[(i*len(mem))//n:((i+1)*len(mem))//n]
                m0set = False
                for q, (pre, _, _) in enumerate(my):
                    if any(isinstance(x, str) and ' m0,' in x for x in pre):
                        if m0set or any(isinstance(z, str) for (_, _, pp) in my[:q] for z in pp) or any(True for (pp, mm, _) in my[:q] if getattr(mm, 'dma', False)): continue
                        m0set = True
                    run(pre); my[q] = ([], my[q][1], my[q][2])
                if fs: fmf(fs[i])
                elif m0set: e('  s_nop 0')
                for (pre, mi, po) in my:
                    if pre:
                        run(pre)
                        if len(pre) == 1: e('  s_nop 0')
                    mi(); run(po)
                npv = len(P) if i == n - 1 else max(1, len(P) // (2*(n - i)))
                run(P[:npv]); P = P[npv:]
        if r in (0, 3, 7, 11): pstamp()

    def cvt_i(mt, d): a = ACC[mt]; return f'  v_cvt_pk_bf16_f32 v{a+d}, v{a+2*d}, v{a+2*d+1}'
    def ow(mt, i, par, tag):
        a = ACC[mt] + 4*i
        g.lgop(f'  ds_write_b128 v{vW[i]}, v[{a}:{a+3}] offset:{L_O + par*TILE + mt*HALF}', tag)
    def ord_(t, u):
        g.lgop(f'  ds_read_b128 a[{OB[u]}:{OB[u]+3}], v{vX[u % 3]} offset:{L_O + ((t - 1) & 1)*TILE + (u // 3)*HALF}', ('O', t, u))
    MIX = opts.get('mix', '')
    def stfl(u): return ' nt' if str(u) in MIX else NT_ST
    S0 = opts.get('s0')
    def ost(t, u, key):
        g.wait((key, 'o', u), lg=('O', t, u))
        fl = stfl(u)
        if S0 is not None and isinstance(key, tuple) and key[1] == 0: fl = '' if S0 == 'none' else ' ' + S0
        g.vmop(f'  buffer_store_dwordx4 a[{OB[u]}:{OB[u]+3}], v{vG[u % 3]}, s[{sO}:{sO+3}], s{sSt0 if u < 3 else sSt1} offen{fl}')
    def prd(t, ps, h):
        mt, kp = ps // 6, ps % 6
        xrd(XF[ps % 3] + 4*h, (sig(t) & 1)*TILE, mt, 2*kp + h, ('X', t, ps))

    if barr < 10: e('  s_barrier'); barr = 11
    if sig(1) % 2 == 0:
        for r in vR: e(f'  v_xor_b32 v{r}, 0x14000, v{r}')
    if not OOB: e('  s_mov_b64 vcc, -1')
    if not early[0]: e('  s_nop 4')
    for i in range(3):
        for k in range(4):
            if 4*i + k >= early[0]: e(cvt_i(0, 4*i + k))
        ow(0, i, 0, ('OW', 0))
    VL = vtake(barr, 99)
    assert not VQ
    for grp in vgroups(VL): run(grp)
    g.wait('pre', vm=('L', 1, 5), lg=('OW', 0))
    e('  s_barrier')
    SCHS = {0: schedule(opts, 0), 1: schedule(opts, 1)}
    OOL = []
    def filler(name, t, par, dyn):
        kind = name[0]; kp = (par, dyn)
        if kind == 'rd': return lambda: prd(t + (name[1] >= 12), name[1] % 12, name[2])
        if kind == 'wx': return lambda: g.wait((kp, 'x', name[1]), lg=('X', t + (name[1] >= 12), name[1] % 12))
        ep = t + name[-1]
        if kind == 'or': return lambda: ord_(ep, name[1])
        if kind == 'os': return lambda: ost(ep, name[1], kp)
        if kind == 'm0': return lambda: e(dma_m0(ep + LA, name[1], sMb))
        if kind == 'dl':
            def f():
                if par == 'pre': e('  s_nop 0')
                if dyn and not OOB and (not GSK or name[1] % 3 == 0):
                    lab[0] += 1
                    e(f'  s_cbranch_vccz L_sk{lab[0]}')
                if WIN and dyn: e(f'  s_waitcnt vmcnt({WIN})')
                dma_ld(ep + LA, name[1])
                if dyn and not OOB and (not GSK or name[1] % 3 == 2): e(f'L_sk{lab[0]}:')
            return f
        if kind == 'np': return lambda: e('  s_nop 0')
        if kind == 'cv': return lambda: e(cvt_i(name[1], name[2]))
        if kind == 'ow': return lambda: ow(name[1], name[2], ep & 1, ('OW', ep))
        if kind == 'mb':
            return lambda: (e(f'  s_xor_b32 s{sMb}, s{sMb}, 0x14000') if sig(ep + LA) % 2 == 0 else None)
        if kind == 'xr':
            return lambda: (e(f'  v_xor_b32 v{vR[name[1]]}, 0x14000, v{vR[name[1]]}') if sig(t + 1) % 2 == 0 else None)
        if dyn:
            if kind == 'sa':
                if name[1] == 0: return lambda: run([f'  s_add_u32 s{sSt1}, s{sSt0}, {HALF}', f'  s_mov_b32 s{sSt0}, s58'])
                return lambda: run(['  s_mov_b32 s58, s59', '  s_mov_b32 s59, s60'][:LA - 1])
            if kind == 'sb': return lambda: e(f'  s_mov_b32 s{57 + LA}, s{sLd}')
            if kind == 'hk':
                k = name[1]
                if k == 0:
                    def f():
                        g.wait((kp, 'hk'), lg=g.lg[-1] if g.mode == 'collect' else 0)
                        assert g.L[-1] == '  s_waitcnt lgkmcnt(0)'
                    return f
                if k == 9: return lambda: run([f'  s_add_u32 s69, s54, {NF}', '  s_lshr_b32 s56, s69, 1'])
                if k == 10: return lambda: run(['  s_bitcmp1_b32 s69, 0', f'  s_cselect_b32 s69, {HALF + 1}, 1'])
                if k == 11: return lambda: run([f'  s_cmp_lt_u32 s54, {NF}', '  s_cselect_b32 s56, s54, s56', '  s_cselect_b32 s69, 0, s69'])
                if k == 1: return lambda: run([f'  s_mul_i32 s56, s56, {4*TILE}', '  s_add_u32 s69, s69, s57'])
                if k == 2: return lambda: run(['  s_add_u32 s56, s56, s69', f'  s_cmp_lt_u32 s54, {NV_}', f'  s_cselect_b32 s56, s56, s{sX+2}'])
                if k == 6: return lambda: run([f'  s_add_u32 s62, s62, s{sStr}', '  s_sub_u32 s61, s61, 1'])
                if k == 7: return lambda: run(['  s_cmp_ge_i32 s61, 0', '  s_cselect_b32 s56, s62, s56'])
                if k == 8: return lambda: run(['  s_cmp_eq_u32 s61, 0', '  s_cselect_b32 s55, s66, s55', f'  s_cselect_b32 s65, {NV_}, s65'])
                if k == 3: return lambda: e(f'  v_mov_b32 v{vZ}, s56')
                if k == 4: return lambda: g.lgop(f'  ds_write_b32 v{vMW}, v{vZ} offset:{4*(ep & 1)}', ('MB', ep))
                if k == 5: return claim
            if kind == 'dm': return lambda: g.lgop(f'  ds_read_b32 v{vZ}, v{vMB} offset:64', 'dummy')
            if kind == 'tr': return lambda: g.lgop(f'  ds_read_b32 v{vTk}, v{vMB} offset:{4*((ep - 1) & 1)}', ('TK', ep))
            if kind == 'tw': return lambda: (g.wait((kp, 'tk'), lg=('TK', ep)), e(f'  v_readfirstlane_b32 s{sLd}, v{vTk}'))
            if kind == 'vc':
                if name[1] == 0: return lambda: run([f'  s_cmp_lt_u32 s{sLd}, s{sX+2}', f'  s_cselect_b32 s{sCnt}, {LA + 2}, s{sCnt}'] + ([] if OOB else ['  s_cselect_b64 vcc, -1, 0']))
                if name[1] == 1: return lambda: run([f'  s_add_u32 s{sLd1}, s{sLd}, {HALF}', f'  s_bitcmp1_b32 s{sLd}, 0'])
                return lambda: run([f'  s_cselect_b32 s{sLd1}, s{sX+2}, s{sLd1}', '  s_cselect_b32 s68, 1, s68', f'  s_andn2_b32 s{sLd}, s{sLd}, 1'])
            if kind == 'hx':
                if name[1] == 0: return lambda: e(f'  s_cmp_eq_u32 s{sCnt}, s68')
                return lambda: (e(f'  s_cbranch_scc1 L_half{par}') if not unroll else None)
            if kind == 'dc': return lambda: e(f'  s_sub_u32 s{sCnt}, s{sCnt}, 1')
            if kind == 'bar':
                def f():
                    lab[0] += 1
                    dmy = any(n[0] == 'dm' for gp in SCHS[1] for n in gp)
                    if g.mode == 'collect' and dmy: assert g.lg[-1] == 'dummy'
                    g.wait((kp, 'bar'), vm=('L', t + 1, 5), lg=g.lg[-2 if dmy else -1] if g.mode == 'collect' else 0)
                    assert 'lgkmcnt' in g.L[-1]
                    if not unroll and not OOB:
                        e(f'  s_cbranch_vccz L_ow{lab[0]}')
                        e(f'L_ob{lab[0]}:')
                        OOL.append(lab[0])
                    if OOB: e(f'  s_cmp_eq_u32 s{sCnt}, 1')
                    e('  s_barrier')
                    if not OOB: e(f'  s_cmp_eq_u32 s{sCnt}, 1')
                    if not unroll: e(f'  s_cbranch_scc1 L_tail{par}')
                return f
        else:
            if kind == 'la': return lambda: e(f'  s_add_u32 s{[sLd, sLd1][name[1]]}, s{[sLd, sLd1][name[1]]}, s{sStr}')
            if kind == 'sa':
                if name[1] == 0: return lambda: e(f'  s_add_u32 s{sSt1}, s{sSt0}, {HALF}')
                return lambda: e(f'  s_add_u32 s{sSt0}, s{sSt0}, s{sStr}')
            if kind == 'dc': return lambda: (run([f'  s_sub_u32 s{sCnt}, s{sCnt}, 1', f'  s_cmp_eq_u32 s{sCnt}, 0']) if par == 0 else None)
            if kind == 'bar':
                return lambda: (g.wait((kp, 'bar'), vm=('L', t + 1, 5), lg=g.lg[-1] if g.mode == 'collect' else 0), e('  s_barrier'))
        raise KeyError(name)
    for gp in range(120, 144):
        for name in SCHS[1][gp]:
            if name[0] in ('xr', 'bar', 'dc', 'la', 'tr', 'tw', 'vc', 'sb', 'hk') or (name[0] == 'wx' and name[1] < 12): continue
            filler(name, 0, 'pre', 0)()
    stamp()

    def iteration(t, dyn, nps=12):
        SCH = SCHS[dyn]
        for ps in range(nps):
            mt, kq = ps // 6, ps % 6
            for nt in range(6):
                for h in range(2):
                    mfma(mt, nt, 2*kq + h, XF[ps % 3] + 4*h)
                    if ST and ps == 11 and nt == 2 and h == 1: stamp()
                    for name in SCH[12*ps + 2*nt + h]: filler(name, t, t & 1, dyn)()

    SCH = SCHS[1]
    done_or = [n[1] for gp in range(120, 144) for n in SCH[gp] if n[0] == 'or']
    done_os = [n[1] for gp in range(120, 144) for n in SCH[gp] if n[0] == 'os']
    vm_of = lambda S: [n for gp in range(120, 144) for n in S[gp] if n[0] in ('or', 'os', 'dl')]
    assert sorted(vm_of(SCHS[0])) == sorted(vm_of(SCHS[1]))
    def tail(t):
        st = lambda u: e(f'  buffer_store_dwordx4 a[{OB[u]}:{OB[u]+3}], v{vG[u % 3]}, s[{sO}:{sO+3}], s{sSt0 if u < 3 else sSt1} offen{stfl(u)}')
        fl = {}
        for u in range(6): fl[u] = [lambda u=u: ord_(t + 1, u)]
        for u in range(6): fl[6 + 2*u] = [f'  s_waitcnt lgkmcnt({5-u})', lambda u=u: st(u)]
        gp = 0; done = []
        for nt in range(6):
            for q in range(4):
                mfma(1, nt, 8 + q, XF[(10 + q // 2) % 3] + 4*(q & 1))
                run(fl.get(gp, []))
                if gp in (17, 19): run([cvt_i(1, gp - 17), cvt_i(1, gp - 16)])
                if gp == 20: ow(1, 0, (t + 1) & 1, 'T')
                gp += 1
        if ST: stamp()
        e(f'  s_add_u32 s{sSt1}, s{sSt0}, {HALF}')
        for k in range(4): e(cvt_i(1, 4 + k))
        ow(1, 1, (t + 1) & 1, 'T')
        for k in range(4): e(cvt_i(1, 8 + k))
        ow(1, 2, (t + 1) & 1, 'T')
        e('  s_waitcnt lgkmcnt(0)')
        e('  s_barrier')
        for u in range(3):
            e(f'  ds_read_b128 a[{XF[0]+4*u}:{XF[0]+4*u+3}], v{vX[u]} offset:{L_O + ((t + 1) & 1)*TILE + HALF}')
        for u in range(3):
            e(f'  s_waitcnt lgkmcnt({2-u})')
            e(f'  buffer_store_dwordx4 a[{XF[0]+4*u}:{XF[0]+4*u+3}], v{vG[u]}, s[{sO}:{sO+3}], s{sSt1} offen{stfl(u+3)}')
        e('  s_branch L_fin' if ST else '  s_endpgm')
    def htail(t):
        pend = [n[1] for gp in range(72, 120) for n in SCH[gp] if n[0] == 'os']
        assert not [n for gp in range(72) for n in SCH[gp] if n[0] in ('cv', 'ow') and n[1] == 0]
        assert not [n for gp in range(72, 120) for n in SCH[gp] if n[0] in ('cv', 'ow') and n[1] == 1]
        st = lambda u: e(f'  buffer_store_dwordx4 a[{OB[u]}:{OB[u]+3}], v{vG[u % 3]}, s[{sO}:{sO+3}], s{sSt0 if u < 3 else sSt1} offen{stfl(u)}')
        e('  s_nop 1')
        for i in range(3):
            for k in range(4): e(cvt_i(0, 4*i + k))
            ow(0, i, t & 1, 'H')
        for u in pend: st(u)
        e(f'  s_add_u32 s{sSt1}, s{sSt0}, {HALF}')
        e(f'  s_mov_b32 s{sSt0}, s58')
        e('  s_waitcnt lgkmcnt(0)')
        e('  s_barrier')
        for u in range(6): ord_(t + 1, u)
        for u in range(6):
            e(f'  s_waitcnt lgkmcnt({5-u})'); st(u)
        e('  s_branch L_fin' if ST else '  s_endpgm')
    if unroll:
        for t in range(1, NTILE + 1): iteration(t, 1)
        iteration(NTILE + 1, 1, 10)
        tail(NTILE + 1)
    else:
        e('.p2align 6')
        e('L_loop0:')
        iteration(1, 1)
        e('L_mid0:')
        iteration(0, 1)
        e('  s_branch L_loop0')
        e('L_tail1:')
        tail(1)
        e('L_tail0:')
        tail(0)
        for p in range(2):
            e(f'L_half{p}:')
            htail(p)
    if ST:
        e('L_fin:')
        e('  s_waitcnt lgkmcnt(0)'); stamp()
        e(f'  v_writelane_b32 v{VR_}, s94, 42')
        e('  s_mov_b32 s94, 40')
        e('  s_waitcnt vmcnt(0) lgkmcnt(0)'); stamp(); e('  s_waitcnt lgkmcnt(0)'); stamp()
        for s in ('s_load_dwordx2 s[86:87], s[0:1], 40', 's_waitcnt lgkmcnt(0)', 's_getreg_b32 s92, hwreg(HW_REG_XCC_ID)',
                  f'v_writelane_b32 v{VR_}, s92, 62',
                  's_mov_b32 s88, s86', 's_and_b32 s89, s87, 0xffff', 's_mov_b32 s90, 1048576', 's_mov_b32 s91, 0x00020000',
                  's_lshl_b32 s92, s2, 11', f's_lshl_b32 s93, s{sW}, 9', 's_add_u32 s92, s92, s93',
                  'v_mbcnt_lo_u32_b32 v1, -1, 0', 'v_mbcnt_hi_u32_b32 v1, -1, v1', 'v_lshlrev_b32 v1, 2, v1',
                  f'buffer_store_dword v{VR_}, v1, s[88:91], s92 offen', f'buffer_store_dword v{VT_}, v1, s[88:91], s92 offen offset:256', 's_waitcnt vmcnt(0)'):
            e('  ' + s)
        e('  s_endpgm')
    seq = [n[0] for gp in list(range(120, 144)) + list(range(120)) for n in SCH[gp] if n[0] in ('dl', 'os')]
    after = len(seq) - 1 - max(i for i, k in enumerate(seq) if k == 'dl')
    for l in OOL:
        e(f'L_ow{l}:')
        e(f'  s_cmp_eq_u32 s{sCnt}, 1')
        e(f'  s_cbranch_scc1 L_ob{l}')
        if LA == 3:
            e(f'  s_waitcnt vmcnt({after + 18})')
            e(f'  s_cmp_eq_u32 s{sCnt}, 3')
            e(f'  s_cbranch_scc1 L_ob{l}')
            e(f'  s_waitcnt vmcnt({after + 12})')
        else:
            e(f'  s_waitcnt vmcnt({after + 6})')
        e(f'  s_branch L_ob{l}')
    e('L_done:')
    e('  s_endpgm')
    e('.section .rodata,"a"')
    e('.p2align 6')
    e(f'.amdhsa_kernel {NAME}')
    e('  .amdhsa_next_free_vgpr 512')
    e('  .amdhsa_next_free_sgpr 100')
    e('  .amdhsa_accum_offset 256')
    e('  .amdhsa_group_segment_fixed_size 0')
    e('  .amdhsa_kernarg_size 48')
    e('  .amdhsa_user_sgpr_count 2')
    e('  .amdhsa_user_sgpr_kernarg_segment_ptr 1')
    e('  .amdhsa_system_sgpr_workgroup_id_x 1')
    e('  .amdhsa_float_denorm_mode_32 3')
    e('.end_amdhsa_kernel')

def schedule(opts, dyn):
    S = [[] for _ in range(144)]
    def put(ps, gp, *names): S[12*ps + gp] += list(names)
    for ps in range(12):
        put(ps, 0, ('rd', ps + 2, 0)); put(ps, 1, ('rd', ps + 2, 1))
        put(ps, 11, ('wx', ps + 1))
    S[12*9 + 11] = [('bar', 0)]
    ep = lambda ps: 1 if ps >= 10 else 0
    sps = [int(z) for z in opts.get('sps', '10,0,2,4,6,8').split(',')]; dps = [int(z) for z in opts.get('dps', '11,1,3,5,7,9').split(',')]
    sord = [int(z) for z in opts.get('sord', '0,1,2,3,4,5').split(',')]
    for u in range(6):
        ps = dps[u]; k = dps[:u].count(ps)
        if k == 0: put(ps, 7, ('m0', u, ep(ps))); put(ps, 8, ('dl', u, ep(ps)))
        elif int(opts.get('dgap', 0)): put(ps, 7 + k, ('m0', u, ep(ps))); put(ps, 8 + k, ('dl', u, ep(ps)))
        else: put(ps, 8, ('m0', u, ep(ps)), ('np', 0), ('dl', u, ep(ps)))
    for i, u in enumerate(sord):
        ps = sps[i]; base = 10 if ps == 10 else (3 if ps in dps else 8)
        put(ps, base + min(1, sps[:i].count(ps)), ('os', u, ep(ps)))
    put(10, 2, ('or', sord[0], 1)); put(10, 4, ('or', sord[1], 1)); put(10, 5, ('or', sord[2], 1))
    o2 = 2 if 11 not in sps else 5
    put(11, o2, ('or', sord[3], 1)); put(11, o2 + 1 if o2 == 2 else 9, ('or', sord[4], 1)); put(11, o2 + 2 if o2 == 2 else 10, ('or', sord[5], 1))
    put(9, 3, ('xr', 0)); put(9, 4, ('xr', 1)); put(9, 5, ('xr', 2)); put(9, 6, ('xr', 3))
    put(11, 6, ('mb', 1))
    put(9, 9, ('sa', 0, 0)); put(9, 10, ('sa', 1, 0))
    if dyn:
        HP = int(opts.get('hp', 4)); HC = int(opts.get('hc', HP))
        put(10, 3, ('tr', 1)); put(10, 6, ('sb', 1)); put(10, 9, ('tw', 1)); put(10, 11, ('vc', 0, 1)); put(11, 0, ('vc', 1, 1)); put(11, 1, ('vc', 2, 1))
        put(5, 10, ('hx', 0, 0)); put(5, 11, ('hx', 1, 0))
        S[12*(HP - 1) + 11] = [('hk', 0, 0)]
        put(4, 3, ('hk', 6, 0)); put(4, 4, ('hk', 8, 0))
        for i, k in enumerate((9, 10, 11, 1, 2, 7, 3)): put(HP, i, ('hk', k, 0))
        put(HP, 7, ('hk', 4, 0))
        assert HP > 4
        if HC == HP:
            put(HP, 9, ('hk', 5, 0)); put(9, 2, ('dm', 0))
        else: put(HC, 7 if HC == 10 else 5, ('hk', 5, ep(HC)))
    else:
        put(4, 3, ('la', 0, 0)); put(10, 6, ('la', 1, 1))
    for i in range(3):
        ps = 1 + i
        for k in range(4): put(ps, 2 + k, ('cv', 1, 4*i + k, 0))
        put(ps, 10 if ps % 2 else 6, ('ow', 1, i, 0))
        ps = 6 + i
        for k in range(4): put(ps, 2 + k, ('cv', 0, 4*i + k, 0))
        put(ps, 10 if ps % 2 else 6, ('ow', 0, i, 0))
    put(11, 5, ('dc', 0))
    return S

if __name__ == '__main__':
    out = sys.argv[1]
    opts = dict(a.split('=', 1) for a in sys.argv[2:])
    for k in ('nt_ld', 'nt_st'):
        if k in opts: opts[k] = (' ' + opts[k].replace('+', ' ')) if opts[k] != 'none' else ''
    open(out, 'w').write(gen(opts))
```

```python
import sys, re
from gen20 import regs_of, hazard_check, HDR, NAME
from gen21 import G

def gen(opts):
    g = G()
    for u in (4, 5, 6, 7):
        g.reset('collect')
        build(g, opts, u)
    for u in (4, 5, 6, 7):
        g.reset('check')
        build(g, opts, u)
        hazard_check(g.L)
    g.reset('emit')
    build(g, opts, False)
    return '\n'.join(g.L) + '\n'

def build(g, opts, unroll):
    e = g.e
    I = lambda k, d: int(opts.get(k, d))
    NT_LD = opts.get('nt_ld', ' nt'); NT_ST = opts.get('nt_st', ' sc1')
    ST = I('st', 0); CPF = I('cpf', 1); ASYM = 0; DYN = 1; NS = I('ns', 4); RF = I('rf', 4); PM = I('pm', 0); DUM = I('dum', 0)
    assert not (ASYM and DYN)
    TILE = 24576; HALF = 12288; STRIDE = 256 * TILE; XB = 113246208
    NTILE = 19 if ASYM else 18
    SST = I('sst', 15); T1 = 0; LA = I('la', 3); WIN = I('win', 0); OOB = I('oob', 1); GSK = I('gsk', 0)
    NPOOL = (4608 - SST*256) // 4
    NH = I('nh', 32); NF = NPOOL - NH // 2; NV_ = NF + NH
    assert NH <= 64 and NH % 2 == 0 and not I('bias', 0)
    L_O = 0; L_X = 2 * TILE; L_D = L_X + 4 * TILE; L_TOT = L_D + 4096
    vX = [1, 2, 3]; vG = [4, 5, 6]; vR = [7, 8, 9, 10]; vW = [11, 12, 13]; vBL = [14, 15, 16]; vTr = [17, 104]; vD = 18; vM = [19, 20]
    VR_, VT_ = 21, 22; vZ = 23
    ACC = [24, 48]; DT = [72, 80, 88]; DG = [96, 100]; vMB = 105; vMW = 106; vTk = 107; vP = 108; BV = 112; NVU = 6
    T = list(range(72, 96))
    RAWF = [144, 168]; XF = [192, 200, 208]; OB = [216 + 4*i for i in range(6)]
    sX, sO, sP, sD = 4, 8, 12, 16
    sW, sLd, sSt0, sSt1, sCnt, sM, sBs, sBo, sLd1, sMb, sDl = 20, 21, 22, 23, 32, 33, 34, 36, 37, 42, 43
    sStr, sAlt = 44, 45
    VFIRST = I('vfirst', 0)
    def bloc(ks):
        if VFIRST: return ('v', BV + 24*ks) if ks < NVU else ('a', 24*(ks - NVU))
        return ('a', 24*ks) if ks < 12 - NVU else ('v', BV + 24*(ks - (12 - NVU)))
    def breg(ks, nt):
        f, b = bloc(ks); return f'{f}[{b+4*nt}:{b+4*nt+3}]'
    def run(items):
        for it in items:
            if callable(it): it()
            else: e(it)
    def stamp(first=False):
        if not ST: return
        if not first:
            e('  s_mov_b32 m0, s94'); e(f'  v_writelane_b32 v{VR_}, s90, m0'); e(f'  v_writelane_b32 v{VT_}, s92, m0'); e('  s_add_u32 s94, s94, 1')
        e('  s_memrealtime s[90:91]'); e('  s_memtime s[92:93]')
    def pstamp():
        if ST < 2: return
        e('  s_waitcnt lgkmcnt(0)'); stamp()
    sig = lambda t: t + NS - 2
    slot = lambda ks: (ks + (14 % NS if NS == 4 else (2 if NS == 3 else 0))) % NS
    assert slot(10) == 0 and slot(11) == 1
    def ring_free_unit(t):
        s = (sig(t) & 3) + 2
        ks = [k for k in range(12) if slot(k) == s]
        return ks[-1] if ks else -1

    e(HDR.rstrip('\n'))
    e(f'; @launch grid=(256,1,1) block=(256,1,1) lds={L_TOT}')
    e('.amdgcn_target "amdgcn-amd-amdhsa--gfx950"')
    e('.text')
    e(f'.globl {NAME}')
    e('.p2align 8')
    e(f'.type {NAME},@function')
    e(f'{NAME}:')
    e('  s_cmp_ge_u32 s2, 256')
    e('  s_cbranch_scc1 L_done')
    e('  s_load_dwordx4 s[28:31], s[0:1], 16')
    e('  s_load_dwordx4 s[24:27], s[0:1], 0')
    if DYN: e('  s_load_dwordx2 s[52:53], s[0:1], 32')
    if ST:
        e('  s_mov_b32 s94, 0'); stamp(True)
    lane, lo4, hi2 = T[2], T[3], T[4]
    if CPF:
        e('  s_getpc_b64 s[40:41]')
        e('L_pc:')
        if CPF == 2:
            e('  s_bfe_u32 s38, s2, 0x20003')
            e(f'  v_and_or_b32 v{T[0]}, v0, -4, s38')
            e(f'  v_lshlrev_b32 v{T[0]}, 7, v{T[0]}')
        elif CPF == 3:
            e('  s_bfe_u32 s38, s2, 0x30003')
            e(f'  v_and_or_b32 v{T[0]}, v0, -8, s38')
            e(f'  v_lshlrev_b32 v{T[0]}, 7, v{T[0]}')
        else:
            e(f'  v_lshlrev_b32 v{T[0]}, 7, v0')
        e(f'  v_min_u32 v{T[0]}, L_done-L_pc, v{T[0]}')
        e(f'  v_mov_b32 v{T[1]}, s41')
        e(f'  v_add_co_u32 v{T[0]}, vcc, s40, v{T[0]}')
        e(f'  v_lshrrev_b32 v{T[5]}, 6, v0')
        e(f'  v_and_b32 v{lane}, 63, v0')
        e(f'  v_addc_co_u32 v{T[1]}, vcc, 0, v{T[1]}, vcc')
        g.vmop(f'  global_load_dword v{vZ}, v[{T[0]}:{T[1]}], off')
    else:
        e(f'  v_lshrrev_b32 v{T[5]}, 6, v0')
        e(f'  v_and_b32 v{lane}, 63, v0')
    e(f'  v_readfirstlane_b32 s{sW}, v{T[5]}')
    e(f'  v_and_b32 v{lo4}, 15, v{lane}')
    e(f'  v_lshlrev_b32 v{T[6]}, 4, v{lane}')
    e(f'  v_lshlrev_b32 v{T[7]}, 4, v{lo4}')
    e('  s_lshr_b32 s47, s2, 3')
    e('  s_mul_i32 s39, s47, 9216')
    e(f'  s_mul_i32 s38, s{sW}, 2304')
    e('  s_add_u32 s39, s39, s38')
    e('  s_and_b32 s38, s2, 7')
    e('  s_lshl_b32 s38, s38, 5')
    e('  s_add_u32 s38, s38, s47')
    e(f'  s_mul_i32 s{sLd}, s38, {TILE}')
    for u in range(3):
        src = 0
        if u: e(f'  v_add_u32 v{T[8]}, {256*u}, v0'); src = T[8]
        e(f'  v_mul_u32_u24 v{T[9]}, 0xaaab, v{src}')
        e(f'  v_lshrrev_b32 v{T[9]}, 21, v{T[9]}')
        e(f'  v_xor_b32 v{T[8]}, v{src}, v{T[9]}')
        e(f'  v_lshlrev_b32 v{vX[u]}, 4, v{T[8]}')
    e(f'  s_add_u32 s{sLd1}, s{sLd}, {HALF}')
    e(f'  s_mov_b32 s{sSt0}, s{sLd}')
    e(f'  s_mov_b32 s{sX+2}, {XB}')
    e(f'  s_mov_b32 s{sX+3}, 0x00020000')
    e(f'  s_lshl_b32 s{sM}, s{sW}, 10')
    e(f'  s_mul_i32 s{sBs}, s{sW}, 6144')
    e(f'  s_mov_b32 s{sBo}, 0')
    e(f'  s_mov_b32 s{sP+2}, 294912')
    e(f'  s_mov_b32 s{sP+3}, 0x00020000')
    e(f'  s_mov_b32 s{sD+2}, 768')
    e(f'  s_mov_b32 s{sD+3}, 0x00020000')
    e(f'  s_add_u32 m0, s{sM}, {L_D}')
    e('  s_waitcnt lgkmcnt(0)')
    def srd(sd, lo, nbytes=None):
        e(f'  s_mov_b32 s{sd}, s{lo}')
        e(f'  s_and_b32 s{sd+1}, s{lo+1}, 0xffff')
        if nbytes:
            e(f'  s_mov_b32 s{sd+2}, {nbytes}')
            e(f'  s_mov_b32 s{sd+3}, 0x00020000')
    srd(sP, 28)
    if I('warm', 1):
        g.vmop(f'  buffer_load_dwordx4 a[{OB[0]}:{OB[0]+3}], v{T[6]}, s[{sP}:{sP+3}], s39 offen')
        g.vmop(f'  buffer_load_dwordx4 a[{OB[1]}:{OB[1]+3}], v{T[6]}, s[{sP}:{sP+3}], s39 offen offset:1024')
        g.vmop(f'  buffer_load_dwordx4 a[{OB[2]}:{OB[2]+3}], v{T[7]}, s[{sP}:{sP+3}], s39 offen offset:2048')
    srd(sD, 26)
    g.vmop(f'  buffer_load_dwordx4 v{T[6]}, s[{sD}:{sD+3}], 0 offen lds', 'dw')
    pstamp()
    def bitems(ks):
        it = []
        for h in range(2):
            pre = [f'  s_add_u32 m0, s{sBs}, {slot(ks)*TILE + h*3072}', f'  s_add_u32 s{sBo}, s{sBo}, {HALF}' if (ks or h) else '  s_nop 0']
            for i in range(3):
                ld = lambda i=i, h=h: g.vmop(f'  buffer_load_dwordx4 v{vBL[i]}, s[{sP}:{sP+3}], s{sBo} offen offset:{i*1024} lds', ('B', ks, 3*h + i))
                ld.dma = True
                it.append((pre if i == 0 else []) + [ld])
        return it
    def dma_m0(t, u, mreg=None):
        if mreg is None: return f'  s_add_u32 m0, s{sM}, {L_X + (sig(t) & 3)*TILE + u*4096}'
        return f'  s_add_u32 m0, s{mreg}, {(sig(t) & 1)*TILE + u*4096}'
    def dma_ld(t, u):
        g.vmop(f'  buffer_load_dwordx4 v{vX[u % 3]}, s[{sX}:{sX+3}], s{sLd if u < 3 else sLd1} offen{NT_LD} lds', ('L', t, u))
    def xitems(t):
        it = []
        for u in range(6):
            ld = lambda u=u: dma_ld(t, u)
            ld.dma = True
            it.append([dma_m0(t, u), '  s_nop 0', ld])
        it[3][1] = f'  s_add_u32 s{sLd}, s{sLd}, {STRIDE}'
        it[5].append(f'  s_add_u32 s{sLd1}, s{sLd1}, {STRIDE}')
        return it
    PLAN = opts.get('plan', 'b0.b1.b2.b3.x0.b4.b5.b6.b7.b8.b9.b10.b11.x1.x2.x3').split('.')
    CAP = [int(z) for z in opts.get('cap', '12,6,12,12,6,6,6,6,6,6,6,6,6,6,6').split(',')]
    VQ = []
    for it in PLAN:
        k = int(it[1:])
        if it[0] == 'p':
            VQ.append((it, 0, -9)); continue
        early = (k - NS if k >= NS else -9) if it[0] == 'b' else (ring_free_unit(k) if ring_free_unit(k) >= 0 else -9)
        VQ += [(it, j, early) for j in range(6)]
    def vtake(r, n):
        out = []
        while VQ and VQ[0][2] <= r and (len(out) < n or (VQ[0][0][0] == 'b' and VQ[0][1] % 3)):
            out.append(VQ.pop(0))
        return out
    def vgroups(lst):
        pitems = lambda t: [[f'  s_add_u32 s50, s{sSt0}, {t*STRIDE}', lambda: g.vmop(f'  buffer_load_dword v{vZ}, v{vP}, s[{sX}:{sX+3}], s50 offen')]]
        return [{'b': bitems, 'x': xitems, 'p': pitems}[it[0]](int(it[1:]))[j] for (it, j, _) in lst]
    def bsetup():
        e(f'  s_mul_i32 s38, s{sW}, 192')
        for i in range(3):
            src = lane
            if i: e(f'  v_add_u32 v{T[8]}, {64*i}, v{lane}'); src = T[8]
            run([f'  v_mul_u32_u24 v{T[9]}, 0xaaab, v{src}', f'  v_lshrrev_b32 v{T[9]}, 19, v{T[9]}',
                 f'  v_mul_u32_u24 v{T[9]}, 576, v{T[9]}',
                 f'  v_add3_u32 v{vBL[i]}, v{T[9]}, v{T[6]}, s38'])
    V0 = vtake(-2, CAP[0])
    srd(sX, 24)
    if I('tlb', 0):
        for k in range(I('tlb', 0)):
            e(f'  s_add_u32 s70, s{sLd}, {k*STRIDE}')
            e(f'  s_load_dword s72, s[24:25], s70')
            if k < 2: e(f'  s_load_dword s73, s[30:31], s70')
    if V0[0][0][0] != 'x': bsetup()
    for grp in vgroups(V0[:6]): run(grp)
    if V0[0][0][0] == 'x': bsetup()
    e(f'  v_lshrrev_b32 v{hi2}, 4, v{lane}')
    e(f'  v_lshlrev_b32 v{vD}, 4, v{hi2}')
    e(f'  v_add_u32 v{vD}, s{sM}, v{vD}')
    e(f'  v_add_u32 v{vD}, {L_D}, v{vD}')
    e(f'  v_bfe_u32 v{T[9]}, v{lane}, 2, 2')
    e(f'  v_and_b32 v{T[10]}, 3, v{lane}')
    e(f'  v_lshl_add_u32 v{T[11]}, v{hi2}, 3, v{T[9]}')
    e(f'  v_mul_u32_u24 v{T[11]}, 192, v{T[11]}')
    e(f'  v_mul_u32_u24 v{T[12]}, 48, v{T[10]}')
    e(f'  v_add3_u32 v{vTr[0]}, v{T[11]}, v{T[12]}, s{sBs}')
    e(f'  v_add_u32 v{vTr[1]}, {2*TILE}, v{vTr[0]}')
    e(f'  v_lshlrev_b32 v{T[11]}, 4, v{T[10]}')
    e(f'  v_mov_b32 v{T[12]}, 0xffff')
    e(f'  v_cmp_lt_u32 vcc, 1, v{T[10]}')
    e(f'  v_lshlrev_b32 v{T[12]}, v{T[11]}, v{T[12]}')
    e(f'  v_mul_u32_u24 v{T[8]}, 0x300, v{lo4}')
    e(f'  v_cndmask_b32 v{vM[1]}, 0, v{T[12]}, vcc')
    e(f'  v_sub_u32 v{vM[0]}, v{T[12]}, v{vM[1]}')
    for grp in vgroups(V0[6:6 + I('db', 6)]): run(grp)
    srd(sO, 30, XB)
    e(f'  v_lshlrev_b32 v{vG[0]}, 4, v0')
    for u in range(1, 3): e(f'  v_add_u32 v{vG[u]}, {4096*u}, v{vG[0]}')
    e(f'  v_xor_b32 v{T[9]}, v{hi2}, v{lo4}')
    e(f'  v_lshl_add_u32 v{vR[0]}, v{T[9]}, 4, v{T[8]}')
    pb = lambda t: L_X + ((sig(t) & 3) >> 1) * 2 * TILE
    e(f'  v_add_u32 v{vR[0]}, {pb(0)}, v{vR[0]}')
    for s in range(1, 4): e(f'  v_xor_b32 v{vR[s]}, {s*64}, v{vR[0]}')
    e(f'  s_mul_i32 s38, s{sW}, 12')
    e(f'  v_mul_u32_u24 v{T[9]}, 3, v{hi2}')
    e(f'  v_add_u32 v{T[9]}, s38, v{T[9]}')
    for i in range(3):
        e(f'  v_add_u32 v{T[10]}, {i}, v{T[9]}')
        e(f'  v_xor_b32 v{T[10]}, v{T[10]}, v{lo4}')
        e(f'  v_lshl_add_u32 v{vW[i]}, v{T[10]}, 4, v{T[8]}')
    e(f'  s_mov_b32 s{sSt1}, {XB}')
    e(f'  s_mov_b32 s{sStr}, {STRIDE}')
    e(f'  s_add_u32 s{sMb}, s{sM}, {pb(LA + 1) ^ (0x14000 if sig(LA + 1) % 2 == 0 else 0)}')
    e('  s_mov_b32 s51, 1')
    if ASYM:
        e('  s_bitcmp1_b32 s2, 0')
        e(f'  s_cselect_b32 s{sCnt}, 16, 18')
        e(f'  s_cselect_b32 s{sAlt}, s{sStr}, {32*TILE}')
    elif DYN:
        if PM:
            e('  s_bfe_u32 s38, s2, 0x20001')
            e(f'  s_mul_i32 s57, s38, {64*TILE}')
        else:
            e('  s_and_b32 s38, s47, 3')
            e(f'  s_mul_i32 s57, s38, {TILE}')
        e(f'  s_add_u32 s57, s57, {SST*STRIDE}')
        e('  s_lshl_b32 s38, s38, 6')
        e('  s_add_u32 s52, s52, s38')
        e('  s_addc_u32 s53, s53, 0')
        e(f'  s_mov_b32 s55, {NF}')
        e('  s_mov_b32 s68, 0')
        e(f'  s_cmp_eq_u32 s{sW}, 0')
        e('  s_cselect_b32 s66, s55, 0')
        e('  s_mov_b32 s55, 0')
        e('  s_mov_b32 s65, 0')
        e(f'  s_mov_b32 s61, {SST - LA - 2}')
        e(f'  s_add_u32 s62, s{sSt0}, {(LA+1)*STRIDE}')
        e('  s_mov_b32 s54, 0')
        for k in range(LA): e(f'  s_add_u32 s{58+k}, s{sSt0}, {(k+1)*STRIDE}')
        e(f'  s_mov_b32 s{sCnt}, {LA + 1}')
        e(f'  v_mov_b32 v{vMB}, {L_D}')
        e(f'  v_add_u32 v{vMW}, s{sM}, v{vMB}')
    else:
        e(f'  s_mov_b32 s{sCnt}, 17')
    lab = [0]
    def claim():
        lab[0] += 1
        e('  s_cmp_lt_u32 s54, s55')
        e('  s_cselect_b32 s54, 1, s65')
        e(f'  s_cbranch_scc0 L_cl{lab[0]}')
        e('  s_atomic_add s54, s[52:53], 0 glc')
        e(f'L_cl{lab[0]}:')
    pstamp()

    def acc(mt, nt): a = ACC[mt] + 4*nt; return f'v[{a}:{a+3}]'
    def mfma(mt, nt, ks, x):
        e(f'  v_mfma_f32_16x16x32_bf16 {acc(mt, nt)}, {breg(ks, nt)}, a[{x}:{x+3}], {"0" if ks == 0 else acc(mt, nt)}')
    def xrd(dst, slotoff, mt, ks, tag):
        g.lgop(f'  ds_read_b128 a[{dst}:{dst+3}], v{vR[ks & 3]} offset:{slotoff + mt*HALF + (ks >> 2)*256}', tag)
    def titems(ks):
        R = RAWF[ks & 1]; D = DG[ks & 1]; s = slot(ks)
        it = [lambda: g.wait(('b', ks), vm=('B', ks, 5))]
        it.append(None)
        for nt in range(6):
            for hh in range(2):
                it.append(lambda nt=nt, hh=hh: g.lgop(f'  ds_read_b64_tr_b16 a[{R+4*nt+2*hh}:{R+4*nt+2*hh+1}], v{vTr[s >> 1]} offset:{(s & 1)*TILE + hh*768 + nt*8}', ('TR', ks, nt)))
        return it
    def mitems(ks): return []
    DGA = 208
    def diag_build():
        g.wait('dwl', vm='dw')
        for ks in range(12): g.lgop(f'  ds_read_b128 v[{ACC[0]+4*ks}:{ACC[0]+4*ks+3}], v{vD} offset:{64*ks}', ('DW', ks))
        for ks in range(12):
            if ks % 3 == 0: g.wait(('dw', ks), lg=('DW', ks + 2))
            for q in range(4): e(f'  v_and_b32 v{ACC[0]+4*ks+q}, v{vM[q & 1]}, v{ACC[0]+4*ks+q}')
            for q in range(4): e(f'  v_accvgpr_write_b32 a{DGA+4*ks+q}, v{ACC[0]+4*ks+q}')
    def smf(ks, nt, h):
        R = RAWF[ks & 1] + 4*nt + 2*h; D = DGA + 4*ks + 2*h; o = DT[nt % 3] + 4*h
        e(f'  v_mfma_f32_4x4x4_16b_bf16 v[{o}:{o+3}], a[{D}:{D+1}], a[{R}:{R+1}], 0')
    posted = set(); barr_ = [-1]; early = [0]
    def post(ks, nt):
        f, b = bloc(ks); o = DT[nt % 3]
        if f == 'v': it = [f'  v_cvt_pk_bf16_f32 v{b+4*nt+q}, v{o+2*q}, v{o+2*q+1}' for q in range(4)]
        else: it = ([f'  v_cvt_pk_bf16_f32 v{o+2*q}, v{o+2*q}, v{o+2*q+1}' for q in range(4)] +
                    [f'  v_accvgpr_write_b32 a{b+4*nt+q}, v{o+2*q}' for q in range(4)])
        return it + [lambda: posted.add((ks, nt))]
    X0 = (sig(0) & 1) * TILE
    def pxrd(k):
        xrd(XF[k % 2], X0, 0, k, ('PX', k)); xrd(XF[k % 2] + 4, X0, 1, k, ('PX', k))
    def fmf(i):
        k, j = i // 12, i % 12
        mt, nt = (j & 1, j // 2) if (k < 11 or not I('l11', 1)) else [(0,0),(0,1),(0,2),(0,3),(1,0),(0,4),(0,5),(1,1),(1,2),(1,3),(1,4),(1,5)][j]
        assert (k, nt) in posted, (k, j)
        if j == 0: g.wait(('px', k), lg=('PX', k))
        mfma(mt, nt, k, XF[k % 2] + 4*mt)
        if k == 11 and I('l11', 1) and barr_[0] >= 10:
            a_ = ACC[0]
            if j in (8, 9, 10, 11):
                for q in (2*(j - 8), 2*(j - 8) + 1): e(f'  v_cvt_pk_bf16_f32 v{a_+q}, v{a_+2*q}, v{a_+2*q+1}')
                early[0] = 2*(j - 8) + 2
    cum = {}
    for r in range(13):
        if r < RF: cum[r] = 0
        else: cum[r] = min(12*r, (144*(r - RF + 1)) // (13 - RF)) if r < 12 else 144
    diag_build()
    for grp in vgroups(V0[6 + I('db', 6):12]): run(grp)
    for grp in vgroups(V0[12:]): run(grp)
    run([x for x in titems(0) if x])
    XB0 = I('xb0', 1) and PLAN[0] == 'x0'
    if XB0:
        g.wait('x0', vm=('L', 0, 5)); e('  s_barrier'); pxrd(0)
    for grp in vgroups(vtake(-1, CAP[1])): run(grp)
    run(mitems(0))
    barr = -1
    for r in range(13):
        F = list(range(cum[r - 1] if r else 0, cum[r]))
        TI = titems(r + 1) if r + 1 < 12 else []
        MI = mitems(r + 1) if r + 1 < 12 else []
        VL = vtake(r, CAP[2 + r]); V = vgroups(VL)
        need = max([ea for (it, j, ea) in VL if it[0] == 'x'] + [-1])
        b = need > barr
        if r == RF and not XB0:
            g.wait('x0', vm=('L', 0, 5)); b = True
        if r == I('bx', 99): b = True
        if b:
            if r < 12: g.wait(('trb', r), lg=('TR', r, 5))
            e('  s_barrier'); barr = min(r, 11); barr_[0] = barr
        if r == RF and not XB0: pxrd(0)
        fss = [F[(nt*len(F))//6:((nt+1)*len(F))//6] for nt in range(6)]
        if r == RF and len(F) > 6 and not XB0: fss[1] = fss[0] + fss[1]; fss[0] = []
        vs = [V[(nt*len(V))//6:((nt+1)*len(V))//6] for nt in range(6)]
        trw = [False]
        for nt in range(6):
            fs = fss[nt]
            P = post(r, nt - 2) if (nt >= 2 and r < 12) else (post(r - 1, nt + 4) if (nt < 2 and r >= 1) else [])
            if len(P) == 9: P = [P[0], P[1], P[2], P[4], P[3], P[5], P[6], P[7], P[8]]
            if nt == 4: P = P + MI[:3]
            if nt == 5: P = MI[3:] + P
            mem = []
            if TI:
                mem.append(([], TI[2 + 2*nt], []))
                mem.append(([], TI[3 + 2*nt], []))
            for m in fs:
                k, j = m // 12, m % 12
                if j in (2, 4) and k + 1 < 12:
                    mem.insert(1, ([], lambda k=k, h=(j - 2) // 2: xrd(XF[(k + 1) % 2] + 4*h, X0, h, k + 1, ('PX', k + 1)), []))
            for (vi, grp) in zip(VL[(nt*len(V))//6:], vs[nt]):
                li = [i for i, x in enumerate(grp) if callable(x)][0]
                pre = [x for x in grp[:li] if x != '  s_nop 0']
                if vi[0][0] == 'b' and vi[2] == r and not trw[0]:
                    pre = pre + [lambda: g.wait(('trd', r), lg=('TR', r, 5))]; trw[0] = True
                mem.append((pre, grp[li], grp[li + 1:]))
            if r < 12:
                if nt == 0: g.wait(('tr', r, nt), vm=('B', r + 1, 5) if TI else None, lg=('TR', r, 2 if r else 0))
                elif nt == 3 or r == 0: g.wait(('tr', r, nt), lg=('TR', r, 5 if r else nt))
                smf(r, nt, 0); smf(r, nt, 1)
                run(P[:2]); P = P[2:]
            n = max(1, len(fs))
            for i in range(n):
                my = mem[(i*len(mem))//n:((i+1)*len(mem))//n]
                m0set = False
                for q, (pre, _, _) in enumerate(my):
                    if any(isinstance(x, str) and ' m0,' in x for x in pre):
                        if m0set or any(isinstance(z, str) for (_, _, pp) in my[:q] for z in pp) or any(True for (pp, mm, _) in my[:q] if getattr(mm, 'dma', False)): continue
                        m0set = True
                    run(pre); my[q] = ([], my[q][1], my[q][2])
                if fs: fmf(fs[i])
                elif m0set: e('  s_nop 0')
                for (pre, mi, po) in my:
                    if pre:
                        run(pre)
                        if len(pre) == 1: e('  s_nop 0')
                    mi(); run(po)
                npv = len(P) if i == n - 1 else max(1, len(P) // (2*(n - i)))
                run(P[:npv]); P = P[npv:]
        if r in (0, 3, 7, 11): pstamp()

    def cvt_i(mt, d): a = ACC[mt]; return f'  v_cvt_pk_bf16_f32 v{a+d}, v{a+2*d}, v{a+2*d+1}'
    def ow(mt, i, par, tag):
        a = ACC[mt] + 4*i
        g.lgop(f'  ds_write_b128 v{vW[i]}, v[{a}:{a+3}] offset:{L_O + par*TILE + mt*HALF}', tag)
    def ord_(t, u):
        g.lgop(f'  ds_read_b128 a[{OB[u]}:{OB[u]+3}], v{vX[u % 3]} offset:{L_O + ((t - 1) & 1)*TILE + (u // 3)*HALF}', ('O', t, u))
    MIX = opts.get('mix', '')
    def stfl(u): return ' nt' if str(u) in MIX else NT_ST
    S0 = opts.get('s0')
    def ost(t, u, key):
        g.wait((key, 'o', u), lg=('O', t, u))
        fl = stfl(u)
        if S0 is not None and isinstance(key, tuple) and key[1] == 0: fl = '' if S0 == 'none' else ' ' + S0
        g.vmop(f'  buffer_store_dwordx4 a[{OB[u]}:{OB[u]+3}], v{vG[u % 3]}, s[{sO}:{sO+3}], s{sSt0 if u < 3 else sSt1} offen{fl}')
    def prd(t, ps, h):
        mt, kp = ps // 6, ps % 6
        xrd(XF[ps % 3] + 4*h, (sig(t) & 1)*TILE, mt, 2*kp + h, ('X', t, ps))

    if barr < 10: e('  s_barrier'); barr = 11
    if sig(1) % 2 == 0:
        for r in vR: e(f'  v_xor_b32 v{r}, 0x14000, v{r}')
    if not OOB: e('  s_mov_b64 vcc, -1')
    if not early[0]: e('  s_nop 4')
    for i in range(3):
        for k in range(4):
            if 4*i + k >= early[0]: e(cvt_i(0, 4*i + k))
        ow(0, i, 0, ('OW', 0))
    VL = vtake(barr, 99)
    assert not VQ
    for grp in vgroups(VL): run(grp)
    g.wait('pre', vm=('L', 1, 5), lg=('OW', 0))
    e('  s_barrier')
    SCHS = {0: schedule(opts, 0), 1: schedule(opts, 1)}
    OOL = []
    def filler(name, t, par, dyn):
        kind = name[0]; kp = (par, dyn)
        if kind == 'rd': return lambda: prd(t + (name[1] >= 12), name[1] % 12, name[2])
        if kind == 'wx': return lambda: g.wait((kp, 'x', name[1]), lg=('X', t + (name[1] >= 12), name[1] % 12))
        ep = t + name[-1]
        if kind == 'or': return lambda: ord_(ep, name[1])
        if kind == 'os': return lambda: ost(ep, name[1], kp)
        if kind == 'm0': return lambda: e(dma_m0(ep + LA, name[1], sMb))
        if kind == 'dl':
            def f():
                if par == 'pre': e('  s_nop 0')
                if dyn and not OOB and (not GSK or name[1] % 3 == 0):
                    lab[0] += 1
                    e(f'  s_cbranch_vccz L_sk{lab[0]}')
                if WIN and dyn: e(f'  s_waitcnt vmcnt({WIN})')
                dma_ld(ep + LA, name[1])
                if dyn and not OOB and (not GSK or name[1] % 3 == 2): e(f'L_sk{lab[0]}:')
            return f
        if kind == 'np': return lambda: e('  s_nop 0')
        if kind == 'cv': return lambda: e(cvt_i(name[1], name[2]))
        if kind == 'ow': return lambda: ow(name[1], name[2], ep & 1, ('OW', ep))
        if kind == 'mb':
            return lambda: (e(f'  s_xor_b32 s{sMb}, s{sMb}, 0x14000') if sig(ep + LA) % 2 == 0 else None)
        if kind == 'xr':
            return lambda: (e(f'  v_xor_b32 v{vR[name[1]]}, 0x14000, v{vR[name[1]]}') if sig(t + 1) % 2 == 0 else None)
        if dyn:
            if kind == 'sa':
                if name[1] == 0: return lambda: run([f'  s_add_u32 s{sSt1}, s{sSt0}, {HALF}', f'  s_mov_b32 s{sSt0}, s58'])
                return lambda: run(['  s_mov_b32 s58, s59', '  s_mov_b32 s59, s60'][:LA - 1])
            if kind == 'sb': return lambda: e(f'  s_mov_b32 s{57 + LA}, s{sLd}')
            if kind == 'hk':
                k = name[1]
                if k == 0:
                    def f():
                        g.wait((kp, 'hk'), lg=g.lg[-1] if g.mode == 'collect' else 0)
                        assert g.L[-1] == '  s_waitcnt lgkmcnt(0)'
                    return f
                if k == 9: return lambda: run([f'  s_add_u32 s69, s54, {NF}', '  s_lshr_b32 s56, s69, 1'])
                if k == 10: return lambda: run(['  s_bitcmp1_b32 s69, 0', f'  s_cselect_b32 s69, {HALF + 1}, 1'])
                if k == 11: return lambda: run([f'  s_cmp_lt_u32 s54, {NF}', '  s_cselect_b32 s56, s54, s56', '  s_cselect_b32 s69, 0, s69'])
                if k == 1: return lambda: run([f'  s_mul_i32 s56, s56, {4*TILE}', '  s_add_u32 s69, s69, s57'])
                if k == 2: return lambda: run(['  s_add_u32 s56, s56, s69', f'  s_cmp_lt_u32 s54, {NV_}', f'  s_cselect_b32 s56, s56, s{sX+2}'])
                if k == 6: return lambda: run([f'  s_add_u32 s62, s62, s{sStr}', '  s_sub_u32 s61, s61, 1'])
                if k == 7: return lambda: run(['  s_cmp_ge_i32 s61, 0', '  s_cselect_b32 s56, s62, s56'])
                if k == 8: return lambda: run(['  s_cmp_eq_u32 s61, 0', '  s_cselect_b32 s55, s66, s55', f'  s_cselect_b32 s65, {NV_}, s65'])
                if k == 3: return lambda: e(f'  v_mov_b32 v{vZ}, s56')
                if k == 4: return lambda: g.lgop(f'  ds_write_b32 v{vMW}, v{vZ} offset:{4*(ep & 1)}', ('MB', ep))
                if k == 5: return claim
            if kind == 'dm': return lambda: g.lgop(f'  ds_read_b32 v{vZ}, v{vMB} offset:64', 'dummy')
            if kind == 'tr': return lambda: g.lgop(f'  ds_read_b32 v{vTk}, v{vMB} offset:{4*((ep - 1) & 1)}', ('TK', ep))
            if kind == 'tw': return lambda: (g.wait((kp, 'tk'), lg=('TK', ep)), e(f'  v_readfirstlane_b32 s{sLd}, v{vTk}'))
            if kind == 'vc':
                if name[1] == 0: return lambda: run([f'  s_cmp_lt_u32 s{sLd}, s{sX+2}', f'  s_cselect_b32 s{sCnt}, {LA + 2}, s{sCnt}'] + ([] if OOB else ['  s_cselect_b64 vcc, -1, 0']))
                if name[1] == 1: return lambda: run([f'  s_add_u32 s{sLd1}, s{sLd}, {HALF}', f'  s_bitcmp1_b32 s{sLd}, 0'])
                return lambda: run([f'  s_cselect_b32 s{sLd1}, s{sX+2}, s{sLd1}', '  s_cselect_b32 s68, 1, s68', f'  s_andn2_b32 s{sLd}, s{sLd}, 1'])
            if kind == 'hx':
                if name[1] == 0: return lambda: e(f'  s_cmp_eq_u32 s{sCnt}, s68')
                return lambda: (e(f'  s_cbranch_scc1 L_half{par}') if not unroll else None)
            if kind == 'dc': return lambda: run([f'  s_sub_u32 s{sCnt}, s{sCnt}, 1', f'  s_cmp_eq_u32 s{sCnt}, 1'])
            if kind == 'bar':
                def f():
                    lab[0] += 1
                    dmy = any(n[0] == 'dm' for gp in SCHS[1] for n in gp)
                    if g.mode == 'collect' and dmy: assert g.lg[-1] == 'dummy'
                    g.wait((kp, 'bar'), vm=('L', t + 1, 5), lg=g.lg[-2 if dmy else -1] if g.mode == 'collect' else 0)
                    assert 'lgkmcnt' in g.L[-1]
                    if not unroll and not OOB:
                        e(f'  s_cbranch_vccz L_ow{lab[0]}')
                        e(f'L_ob{lab[0]}:')
                        OOL.append(lab[0])
                    e('  s_barrier')
                return f
        else:
            if kind == 'la': return lambda: e(f'  s_add_u32 s{[sLd, sLd1][name[1]]}, s{[sLd, sLd1][name[1]]}, s{sStr}')
            if kind == 'sa':
                if name[1] == 0: return lambda: e(f'  s_add_u32 s{sSt1}, s{sSt0}, {HALF}')
                return lambda: e(f'  s_add_u32 s{sSt0}, s{sSt0}, s{sStr}')
            if kind == 'dc': return lambda: (run([f'  s_sub_u32 s{sCnt}, s{sCnt}, 1', f'  s_cmp_eq_u32 s{sCnt}, 0']) if par == 0 else None)
            if kind == 'bar':
                return lambda: (g.wait((kp, 'bar'), vm=('L', t + 1, 5), lg=g.lg[-1] if g.mode == 'collect' else 0), e('  s_barrier'))
        raise KeyError(name)
    for gp in range(120, 144):
        for name in SCHS[1][gp]:
            if name[0] in ('xr', 'bar', 'dc', 'la', 'tr', 'tw', 'vc', 'sb', 'hk') or (name[0] == 'wx' and name[1] < 12): continue
            filler(name, 0, 'pre', 0)()
    stamp()

    def iteration(t, dyn, nps=12):
        SCH = SCHS[dyn]
        for ps in range(nps):
            mt, kq = ps // 6, ps % 6
            for nt in range(6):
                for h in range(2):
                    mfma(mt, nt, 2*kq + h, XF[ps % 3] + 4*h)
                    if ST and ps == 11 and nt == 2 and h == 1: stamp()
                    for name in SCH[12*ps + 2*nt + h]: filler(name, t, t & 1, dyn)()

    SCH = SCHS[1]
    done_or = [n[1] for gp in range(120, 144) for n in SCH[gp] if n[0] == 'or']
    done_os = [n[1] for gp in range(120, 144) for n in SCH[gp] if n[0] == 'os']
    vm_of = lambda S: [n for gp in range(120, 144) for n in S[gp] if n[0] in ('or', 'os', 'dl')]
    assert sorted(vm_of(SCHS[0])) == sorted(vm_of(SCHS[1]))
    def last(t, half=None):
        p = t & 1; key = ('last', p)
        assert not [n for gp in range(120, 144) for n in SCH[gp] if n[0] == 'os']
        assert sorted(done_or) == list(range(6))
        def st(r, u, so): g.vmop(f'  buffer_store_dwordx4 a[{r}:{r+3}], v{vG[u % 3]}, s[{sO}:{sO+3}], s{so} offen{NT_ST}')
        def rdh(par, mt, tag):
            return [lambda u=u: g.lgop(f'  ds_read_b128 a[{RAWF[0]+4*u}:{RAWF[0]+4*u+3}], v{vX[u]} offset:{L_O + par*TILE + mt*HALF}', (tag, u)) for u in range(3)]
        def sth(tag, so, k):
            return [lambda u=u: (g.wait((key, k, u), lg=(tag, u)), st(RAWF[0] + 4*u, u, so)) for u in range(3)]
        def bar(k): return lambda: (g.wait((key, k), lg=g.lg[-1] if g.mode == 'collect' else 0), e('  s_barrier'))
        FL = [[] for _ in range(144)]
        def put(ps, gp, *x): FL[12*ps + gp] += list(x)
        for ps in range(10):
            put(ps, 0, lambda ps=ps: prd(t, ps + 2, 0)); put(ps, 1, lambda ps=ps: prd(t, ps + 2, 1))
        for ps in range(10): put(ps, 11, lambda ps=ps: g.wait((key, 'x', ps), lg=('X', t, ps + 1 if ps < 9 else 11)))
        for u in range(6): put(u // 2, 3 + 5*(u & 1), lambda u=u: ost(t, u, key))
        cg = [(0, 4), (0, 5), (0, 6), (0, 7), (0, 9), (0, 10), (1, 2), (1, 4), (1, 6), (1, 7), (1, 9), (1, 10)]
        for d in range(12): put(*cg[d], cvt_i(1, d))
        put(0, 10, lambda: ow(1, 0, p, 'LW')); put(1, 5, lambda: ow(1, 1, p, 'LW')); put(2, 2, lambda: ow(1, 2, p, 'LW'))
        FL[12*2 + 11] = [bar('m')]
        put(2, 9, f'  s_add_u32 s{sSt1}, s{sSt0}, {HALF}', f'  s_mov_b32 s{sSt0}, s58')
        for u, x in enumerate(rdh(p, 1, 'LA')): put(3, 2 + u, x)
        for u, x in enumerate(sth('LA', sSt1, 'a')): put(*[(3, 10), (4, 4), (4, 9)][u], x)
        put(5, 10, '  s_cmp_eq_u32 s68, 1')
        cg = [(6, 2), (6, 3), (6, 4), (6, 5), (6, 7), (6, 8), (6, 9), (6, 10), (7, 3), (7, 4), (7, 5), (7, 6)]
        for d in range(12): put(*cg[d], cvt_i(0, d))
        put(6, 6, lambda: ow(0, 0, p, 'LW')); put(7, 2, lambda: ow(0, 1, p, 'LW')); put(7, 7, lambda: ow(0, 2, p, 'LW'))
        FL[12*7 + 11] = [bar('b')]
        for u, x in enumerate(rdh(p, 0, 'LB')): put(8, 2 + u, x)
        for u, x in enumerate(sth('LB', sSt0, 'b')): put(*[(8, 10), (9, 4), (9, 9)][u], x)
        put(9, 10, f'  s_add_u32 s{sSt1}, s{sSt0}, {HALF}')
        def body(p0, p1):
            for ps in range(p0, p1):
                mt, kq = ps // 6, ps % 6
                for nt in range(6):
                    for h in range(2):
                        mfma(mt, nt, 2*kq + h, XF[ps % 3] + 4*h)
                        run(FL[12*ps + 2*nt + h])
        def fin(mt, par, so, d0):
            for i in range(d0 // 4, 3):
                for k in range(4): e(cvt_i(mt, 4*i + k))
                ow(mt, i, par, 'LW')
            e('  s_waitcnt lgkmcnt(0)')
            e('  s_barrier')
            for u in range(3): e(f'  ds_read_b128 a[{OB[u]}:{OB[u]+3}], v{vX[u]} offset:{L_O + par*TILE + mt*HALF}')
            for u in range(3):
                e(f'  s_waitcnt lgkmcnt({2-u})'); st(OB[u], u, so)
            e('  s_branch L_fin' if ST else '  s_endpgm')
        body(0, 6)
        if half is None: e(f'  s_cbranch_scc1 L_half{p}')
        if half is not True:
            body(6, 10)
            gp = 0
            for nt in range(6):
                for q in range(4):
                    mfma(1, nt, 8 + q, XF[(10 + q // 2) % 3] + 4*(q & 1))
                    if gp in (15, 16): run([cvt_i(1, 2*(gp - 15)), cvt_i(1, 2*(gp - 15) + 1)])
                    if gp == 17: ow(1, 0, p ^ 1, 'LW')
                    if gp in (21, 22): run([cvt_i(1, 4 + 2*(gp - 21)), cvt_i(1, 5 + 2*(gp - 21))])
                    if gp == 23: ow(1, 1, p ^ 1, 'LW')
                    gp += 1
            if ST: stamp()
            e('  s_nop 4')
            fin(1, p ^ 1, sSt1, 8)
        if half is None: e(f'L_half{p}:')
        if half is not False:
            e('  s_nop 1')
            fin(0, p, sSt0, 0)
    if unroll:
        nt_ = NTILE + (unroll & 1)
        for t in range(1, nt_ + 1): iteration(t, 1)
        last(nt_ + 1, bool(unroll & 2))
    else:
        e('.p2align 6')
        e('L_loop0:')
        iteration(1, 1)
        e('  s_cbranch_scc1 L_tail0')
        e('L_mid0:')
        iteration(0, 1)
        e('  s_cbranch_scc0 L_loop0')
        e('L_tail1:')
        last(1)
        e('L_tail0:')
        last(0)
    if ST:
        e('L_fin:')
        e('  s_waitcnt lgkmcnt(0)'); stamp()
        e(f'  v_writelane_b32 v{VR_}, s94, 42')
        e('  s_mov_b32 s94, 40')
        e('  s_waitcnt vmcnt(0) lgkmcnt(0)'); stamp(); e('  s_waitcnt lgkmcnt(0)'); stamp()
        for s in ('s_load_dwordx2 s[86:87], s[0:1], 40', 's_waitcnt lgkmcnt(0)', 's_getreg_b32 s92, hwreg(HW_REG_XCC_ID)',
                  f'v_writelane_b32 v{VR_}, s92, 62',
                  's_mov_b32 s88, s86', 's_and_b32 s89, s87, 0xffff', 's_mov_b32 s90, 1048576', 's_mov_b32 s91, 0x00020000',
                  's_lshl_b32 s92, s2, 11', f's_lshl_b32 s93, s{sW}, 9', 's_add_u32 s92, s92, s93',
                  'v_mbcnt_lo_u32_b32 v1, -1, 0', 'v_mbcnt_hi_u32_b32 v1, -1, v1', 'v_lshlrev_b32 v1, 2, v1',
                  f'buffer_store_dword v{VR_}, v1, s[88:91], s92 offen', f'buffer_store_dword v{VT_}, v1, s[88:91], s92 offen offset:256', 's_waitcnt vmcnt(0)'):
            e('  ' + s)
        e('  s_endpgm')
    seq = [n[0] for gp in list(range(120, 144)) + list(range(120)) for n in SCH[gp] if n[0] in ('dl', 'os')]
    after = len(seq) - 1 - max(i for i, k in enumerate(seq) if k == 'dl')
    for l in OOL:
        e(f'L_ow{l}:')
        if LA == 3:
            e(f'  s_waitcnt vmcnt({after + 18})')
            e(f'  s_cmp_eq_u32 s{sCnt}, 3')
            e(f'  s_cbranch_scc1 L_ob{l}')
            e(f'  s_waitcnt vmcnt({after + 12})')
        else:
            e(f'  s_waitcnt vmcnt({after + 6})')
        e(f'  s_branch L_ob{l}')
    e('L_done:')
    e('  s_endpgm')
    e('.section .rodata,"a"')
    e('.p2align 6')
    e(f'.amdhsa_kernel {NAME}')
    e('  .amdhsa_next_free_vgpr 512')
    e('  .amdhsa_next_free_sgpr 100')
    e('  .amdhsa_accum_offset 256')
    e('  .amdhsa_group_segment_fixed_size 0')
    e('  .amdhsa_kernarg_size 48')
    e('  .amdhsa_user_sgpr_count 2')
    e('  .amdhsa_user_sgpr_kernarg_segment_ptr 1')
    e('  .amdhsa_system_sgpr_workgroup_id_x 1')
    e('  .amdhsa_float_denorm_mode_32 3')
    e('.end_amdhsa_kernel')

def schedule(opts, dyn):
    S = [[] for _ in range(144)]
    def put(ps, gp, *names): S[12*ps + gp] += list(names)
    for ps in range(12):
        put(ps, 0, ('rd', ps + 2, 0)); put(ps, 1, ('rd', ps + 2, 1))
        put(ps, 11, ('wx', ps + 1))
    S[12*9 + 11] = [('bar', 0)]
    ep = lambda ps: 1 if ps >= 10 else 0
    sps = [int(z) for z in opts.get('sps', '10,0,2,4,6,8').split(',')]; dps = [int(z) for z in opts.get('dps', '11,1,3,5,7,9').split(',')]
    sord = [int(z) for z in opts.get('sord', '0,1,2,3,4,5').split(',')]
    for u in range(6):
        ps = dps[u]; k = dps[:u].count(ps)
        if k == 0: put(ps, 7, ('m0', u, ep(ps))); put(ps, 8, ('dl', u, ep(ps)))
        elif int(opts.get('dgap', 0)): put(ps, 7 + k, ('m0', u, ep(ps))); put(ps, 8 + k, ('dl', u, ep(ps)))
        else: put(ps, 8, ('m0', u, ep(ps)), ('np', 0), ('dl', u, ep(ps)))
    for i, u in enumerate(sord):
        ps = sps[i]; base = 10 if ps == 10 else (3 if ps in dps else 8)
        put(ps, base + min(1, sps[:i].count(ps)), ('os', u, ep(ps)))
    put(10, 2, ('or', sord[0], 1)); put(10, 4, ('or', sord[1], 1)); put(10, 5, ('or', sord[2], 1))
    o2 = 2 if 11 not in sps else 5
    put(11, o2, ('or', sord[3], 1)); put(11, o2 + 1 if o2 == 2 else 9, ('or', sord[4], 1)); put(11, o2 + 2 if o2 == 2 else 10, ('or', sord[5], 1))
    put(9, 3, ('xr', 0)); put(9, 4, ('xr', 1)); put(9, 5, ('xr', 2)); put(9, 6, ('xr', 3))
    put(11, 6, ('mb', 1))
    put(9, 9, ('sa', 0, 0)); put(9, 10, ('sa', 1, 0))
    if dyn:
        HP = int(opts.get('hp', 4)); HC = int(opts.get('hc', HP))
        put(10, 3, ('tr', 1)); put(10, 6, ('sb', 1)); put(10, 9, ('tw', 1)); put(10, 11, ('vc', 0, 1)); put(11, 0, ('vc', 1, 1)); put(11, 1, ('vc', 2, 1))
        S[12*(HP - 1) + 11] = [('hk', 0, 0)]
        put(4, 3, ('hk', 6, 0)); put(4, 4, ('hk', 8, 0))
        for i, k in enumerate((9, 10, 11, 1, 2, 7, 3)): put(HP, i, ('hk', k, 0))
        put(HP, 7, ('hk', 4, 0))
        assert HP > 4
        if HC == HP:
            put(HP, 9, ('hk', 5, 0)); put(9, 2, ('dm', 0))
        else: put(HC, 7 if HC == 10 else 5, ('hk', 5, ep(HC)))
    else:
        put(4, 3, ('la', 0, 0)); put(10, 6, ('la', 1, 1))
    for i in range(3):
        ps = 1 + i
        for k in range(4): put(ps, 2 + k, ('cv', 1, 4*i + k, 0))
        put(ps, 10 if ps % 2 else 6, ('ow', 1, i, 0))
        ps = 6 + i
        for k in range(4): put(ps, 2 + k, ('cv', 0, 4*i + k, 0))
        put(ps, 10 if ps % 2 else 6, ('ow', 0, i, 0))
    put(11, 10, ('dc', 0))
    return S

if __name__ == '__main__':
    out = sys.argv[1]
    opts = dict(a.split('=', 1) for a in sys.argv[2:])
    for k in ('nt_ld', 'nt_st'):
        if k in opts: opts[k] = (' ' + opts[k].replace('+', ' ')) if opts[k] != 'none' else ''
    open(out, 'w').write(gen(opts))
```
